```python
import torch

def _softmax(x, axis=-1):
    return torch.softmax(x, dim=axis)
def _gelu(x):
    return torch.nn.functional.gelu(x, approximate="tanh")
def _silu(x):
    return torch.nn.functional.silu(x)
def _sigmoid(x):
    return torch.sigmoid(x)
def _layernorm(x, axis=-1, eps=1e-5):
    m = x.mean(dim=axis, keepdim=True)
    v = x.var(dim=axis, keepdim=True, unbiased=False)
    return (x - m) / torch.sqrt(v + eps)
def _scatter_add(tgt, idx, src, axis=0):
    return tgt.clone().index_add_(axis, idx, src)
def _segment_sum(src, seg, n):
    out = torch.zeros((n,) + src.shape[1:], dtype=src.dtype)
    return out.index_add_(0, seg, src)
def _pad(x, pw):
    flat = tuple(v for pair in reversed(pw) for v in pair)
    return torch.nn.functional.pad(x, flat)

kernel_name = 'gated_mix__sliding_block__swiglu_ffn__prompt'

def setup_inputs():

    _w = (lambda a: (lambda t: t.to(torch.bfloat16) if t.is_floating_point() else t)(torch.as_tensor(a)))
    def _A_setup():
        B, S, D = 1, 2048, 512
        return {
            "x": _w((lambda *s: torch.randn(*s, dtype=torch.bfloat16) * 0.05)(B, S, D)),
            "wqkv": _w((lambda *s: torch.randn(*s, dtype=torch.bfloat16) * 0.8)(D, 3 * D)),
            "wo": _w((lambda *s: torch.randn(*s, dtype=torch.bfloat16) * 0.05)(D, D)),
        }
    _A_in = _A_setup()

    def _B_setup():
        B, S, D, F = 1, 2048, 512, 1792
        return {
            "x": _w((lambda *s: torch.randn(*s, dtype=torch.bfloat16) * 0.05)(B, S, D)),
            "w_gate": _w((lambda *s: torch.randn(*s, dtype=torch.bfloat16) * 0.2)(D, F)),
            "w_up": _w((lambda *s: torch.randn(*s, dtype=torch.bfloat16) * 0.2)(D, F)),
            "w_down": _w((lambda *s: torch.randn(*s, dtype=torch.bfloat16) * 0.2)(F, D)),
        }
    _B_in = _B_setup()

    return {
        "A_x": _A_in["x"],
        "A_wqkv": _A_in["wqkv"],
        "A_wo": _A_in["wo"],
        "B_x": _B_in["x"],
        "B_w_gate": _B_in["w_gate"],
        "B_w_up": _B_in["w_up"],
        "B_w_down": _B_in["w_down"],
        "gate_w": _w((lambda *s: torch.randn(*s, dtype=torch.bfloat16) * 0.05)(512) * 16.0),
    }

def reference(A_x, A_wqkv, A_wo, B_x, B_w_gate, B_w_up, B_w_down, gate_w):
    def _A_ref(x, wqkv, wo):
        B, S, D = x.shape
        H = 32; Dh = D // H; W = 256
        qkv = (lambda x, *d: x.permute(*d))((x @ wqkv).reshape(B, S, 3, H, Dh), 2, 0, 3, 1, 4)
        q, k, v = qkv[0], qkv[1], qkv[2]
        scores = torch.einsum("bhqd,bhkd->bhqk", q, k) * (Dh ** -0.5)
        idx = torch.arange(S)
        mask = (idx[:, None] - idx[None, :] >= 0) & (idx[:, None] - idx[None, :] < W)
        scores = torch.where(mask[None, None], scores, -1e9)
        p = _softmax(scores, axis=-1)
        o = torch.einsum("bhqk,bhkd->bhqd", p, v)
        return (lambda x, *d: x.permute(*d))(o, 0, 2, 1, 3).reshape(B, S, D) @ wo

    def _B_ref(x, w_gate, w_up, w_down):
        g = _silu(x @ w_gate)
        u = x @ w_up
        return (g * u) @ w_down

    x = A_x
    g = _sigmoid((x * gate_w).sum(-1, keepdims=True))
    a = _A_ref(x, A_wqkv, A_wo)
    b = _B_ref(x, B_w_gate, B_w_up, B_w_down)
    return g * a + (1 - g) * b
```

```python
import re, heapq, subprocess, os

TRANS = ("v_exp_f32", "v_log_f32", "v_rcp_f32", "v_rsq_f32", "v_sqrt_f32", "v_sin_f32", "v_cos_f32")
_REG = re.compile(r"^(?:-|abs\(|\|)?([vas])(?:(\d+)|\[(\d+):(\d+)\])\)?\|?$")

def regs_of(op):
    op = op.strip()
    if op in ("vcc", "exec", "m0"): return [op]
    if op in ("vcc_lo", "vcc_hi"): return ["vcc"]
    if op in ("exec_lo", "exec_hi"): return ["exec"]
    m = _REG.match(op)
    if not m: return []
    if m.group(2) is not None: return [m.group(1) + m.group(2)]
    return [m.group(1) + str(i) for i in range(int(m.group(3)), int(m.group(4)) + 1)]

class Ins:
    def __init__(s, text):
        s.text = text
        t = text.strip()
        sp = t.split(None, 1)
        s.op = sp[0]
        rest = sp[1] if len(sp) > 1 else ""
        parts = [p.strip() for p in rest.split(",")] if rest else []
        mods = ""
        if parts:
            l = parts[-1].split(None, 1)
            parts[-1] = l[0]
            mods = l[1] if len(l) > 1 else ""
        s.mods = mods
        ops = [regs_of(p) for p in parts]
        flat = lambda L: [r for x in L for r in x]
        op = s.op
        s.C = []; s.AB = []; s.sdata = []
        s.q = None
        if op.endswith(":"):
            s.kind = "label"; s.R = []; s.W = []
        elif op.startswith("v_mfma"):
            s.kind = "mfma"; s.W = ops[0]; s.AB = ops[1] + ops[2]; s.C = ops[3]; s.R = s.AB + s.C
            s.passes = 8 if "32x32" in op else 4
        elif op.startswith("ds_read"):
            s.kind = "ds"; s.q = "lg"; s.W = ops[0]; s.R = flat(ops[1:])
        elif op.startswith("ds_write"):
            s.kind = "ds"; s.q = "lg"; s.W = []; s.R = flat(ops)
        elif op.startswith("buffer_load") or op.startswith("global_load"):
            s.kind = "vm"; s.q = "vm"
            if re.search(r"\blds\b", mods):
                s.W = []; s.R = flat(ops) + ["m0"]; s.dma = True
            else:
                s.W = ops[0]; s.R = flat(ops[1:])
        elif op.startswith("buffer_store"):
            s.kind = "vm"; s.q = "vm"; s.W = []; s.R = flat(ops)
            if "x4" in op or "x3" in op: s.sdata = ops[0]
        elif op.startswith("global_store"):
            s.kind = "vm"; s.q = "vm"; s.W = []; s.R = flat(ops)
            if "x4" in op or "x3" in op: s.sdata = ops[1]
        elif op in ("buffer_inv", "buffer_wbl2"):
            s.kind = "vm"; s.q = "vm"; s.W = []; s.R = []
        elif op.startswith("s_load") or op in ("s_memtime", "s_memrealtime"):
            s.kind = "smem"; s.W = ops[0]; s.R = flat(ops[1:])
        elif op in ("s_waitcnt", "s_nop", "s_barrier", "s_endpgm", "s_sleep", "s_setprio") or op.startswith("s_cbranch") or op == "s_branch":
            s.kind = "ctl"; s.W = []; s.R = []
            if "vcc" in op: s.R = ["vcc"]
        elif op.startswith("s_cmp") or op.startswith("s_bitcmp"):
            s.kind = "salu"; s.W = []; s.R = flat(ops)
        elif op.startswith("s_"):
            s.kind = "salu"; s.W = ops[0]; s.R = flat(ops[1:])
            if "saveexec" in op: s.W = s.W + ["exec"]; s.R = s.R + ["exec"]
        elif op.startswith("v_"):
            base = re.sub(r"_(e32|e64|dpp|sdwa)$", "", op)
            s.kind = "trans" if base in TRANS else "valu"
            s.W = ops[0]; s.R = flat(ops[1:])
            if "_co_" in op: s.W = ops[0] + ops[1]; s.R = flat(ops[2:])
            if base.startswith("v_fmac") or base.startswith("v_writelane") or base.startswith("v_dot2c") or op.endswith("_dpp"):
                s.R = s.R + ops[0]
            if "permlane" in op: s.W = ops[0] + ops[1]; s.R = ops[0] + ops[1]
        else:
            raise ValueError("unknown instruction " + text)
        s.cost = {"mfma": 8, "trans": 8, "label": 0}.get(s.kind, 4)
        if op == "s_nop": s.cost = 4 * (int(parts[0]) + 1)

class Node:
    def __init__(s, texts, R=(), W=(), lat=None, prio=0, crit=True, name=None):
        if isinstance(texts, str): texts = [texts]
        s.ins = [Ins(t) for t in texts]
        s.R = set(R); s.W = set(W)
        for i in s.ins:
            s.R |= set(r for r in i.R); s.W |= set(i.W)
        s.xR = set(R); s.xW = set(W)
        s.cost = sum(i.cost for i in s.ins)
        s.kind = s.ins[-1].kind if len(s.ins) == 1 else "group"
        s.mfma = any(i.kind == "mfma" for i in s.ins)
        s.lat = lat; s.prio = prio; s.crit = crit
        s.preds = {}; s.succs = {}
        s.name = name

DS_LAT = 110
VM_LAT = 900
def edge_lat(p, c, r, typ):
    if typ == "war":
        cand = [i for i in p.ins if r in i.R]
    else:
        cand = [i for i in p.ins if r in i.W]
    if not cand: cand = [i for i in p.ins if i.q] or p.ins
    last = cand[-1]
    k = last.kind
    if typ == "raw":
        if p.lat is not None and (last.q or r[0] == "@" or k == "smem"): return p.cost + p.lat
        if k == "mfma":
            if c.mfma and r in c.ins[-1].C and c.ins[-1].C == last.W: return last.passes * 4
            return 8 + (13 if last.passes == 8 else 9) * 4
        if k == "ds": return p.cost + DS_LAT
        if k == "vm": return p.cost + VM_LAT
        if k == "smem": return 200
        if k in ("valu", "trans"):
            if c.mfma: return p.cost + 8
            f = c.ins[0]
            if r[0] == "s" or r == "vcc":
                return p.cost + (20 if f.kind == "vm" else 8 if f.kind in ("valu", "trans") else 4)
            if "dpp" in f.op or "permlane" in f.op: return p.cost + 8
            if "readlane" in f.op or "readfirstlane" in f.op: return p.cost + 4
            if k == "trans" and f.kind != "trans": return p.cost + 4
            return p.cost
        if r == "m0": return p.cost + 4
        return p.cost
    if typ == "war":
        if r[0] == "@" and k == "ds": return p.cost + DS_LAT
        if k == "mfma" and r in last.C and not c.mfma: return 8 + 7 * 4
        if r in last.sdata: return p.cost + 8
        return p.cost
    if typ == "waw":
        if k == "mfma" and not c.mfma: return 8 + 13 * 4
        if k == "ds" and r[0] != "@": return p.cost + DS_LAT
        if k == "vm" and r[0] != "@": return p.cost + (p.lat if p.lat is not None else VM_LAT)
        return p.cost

class Region:
    def __init__(s, name, slack=0):
        s.name = name; s.nodes = []; s.slack = slack
        s.mfma_chain = True
    def add(s, texts, **kw):
        n = Node(texts, **kw); s.nodes.append(n); return n
    __call__ = add

    def build(s):
        lastw = {}; readers = {}
        prevm = None
        def edge(p, c, l):
            if p is c: return
            if c.preds.get(p, -1) < l: c.preds[p] = l; p.succs[c] = l
        for idx, n in enumerate(s.nodes):
            n.idx = idx
            for r in n.R:
                if r in lastw: edge(lastw[r], n, edge_lat(lastw[r], n, r, "raw"))
            for r in n.W:
                if r in lastw: edge(lastw[r], n, edge_lat(lastw[r], n, r, "waw"))
                for p in readers.get(r, ()): edge(p, n, edge_lat(p, n, r, "war"))
            for r in n.R: readers.setdefault(r, []).append(n)
            for r in n.W: lastw[r] = n; readers[r] = []
            if n.mfma and n.crit:
                if prevm is not None: edge(prevm, n, prevm.ins[-1].passes * 4)
                prevm = n
        for n in reversed(s.nodes):
            n.h = n.cost + max([l + c.h - n.cost for c, l in n.succs.items()] + [0]) + n.prio

    def schedule(s, vmq=None, lgq=None, verbose=False):
        s.build()
        vmq = list(vmq or []); lgq = list(lgq or [])
        out = []
        t = 0; mfree = 0
        for n in s.nodes: n.np = len(n.preds); n.est = 0
        ready = [n for n in s.nodes if n.np == 0]
        nwait = 0; idle = 0
        def need(n, q):
            k = -1
            touch = n.R | n.W
            for j, (W, R) in enumerate(q):
                if W & touch or (R & n.xW): k = j
            return k
        done = 0
        while ready:
            st = lambda n: max(n.est, mfree) if n.mfma else n.est
            c = [n for n in ready if st(n) <= t]
            ms = [n for n in ready if n.mfma and n.crit]
            tm = min([st(n) for n in ms]) if ms else None
            if c and tm is not None and tm > t:
                c = [n for n in c if t + n.cost + (4 if (need(n, vmq) >= 0 or need(n, lgq) >= 0) else 0) <= tm + s.slack or n.cost > 20]
            if not c:
                nt = min(x for x in [st(n) for n in ready] if x > t)
                idle += nt - t; t = nt; continue
            cm = [n for n in c if n.mfma]
            n = max(cm or c, key=lambda n: (n.h, -n.idx))
            ready.remove(n)
            kv = need(n, vmq); kl = need(n, lgq)
            if kv >= 0 or kl >= 0:
                w = []
                if kv >= 0: w.append(f"vmcnt({min(63, len(vmq) - 1 - kv)})"); vmq = vmq[kv + 1:]
                if kl >= 0: w.append(f"lgkmcnt({min(15, len(lgq) - 1 - kl)})"); lgq = lgq[kl + 1:]
                out.append(Ins("s_waitcnt " + " ".join(w))); t += 4; nwait += 1
            n.t = t
            for i in n.ins:
                i.t = t
                out.append(i)
                if i.q:
                    last = i is [x for x in n.ins if x.q == i.q][-1]
                    ent = (set(i.W) | (n.xW if last else set()), (n.xR if last else set()))
                    (vmq if i.q == "vm" else lgq).append(ent)
                if i.op == "s_waitcnt":
                    m = re.search(r"vmcnt\((\d+)\)", i.text)
                    if m: k = int(m.group(1)); vmq = vmq[len(vmq) - k:] if k < len(vmq) and k > 0 else ([] if k == 0 else vmq)
                    m = re.search(r"lgkmcnt\((\d+)\)", i.text)
                    if m: k = int(m.group(1)); lgq = lgq[len(lgq) - k:] if k < len(lgq) and k > 0 else ([] if k == 0 else lgq)
            if n.mfma: mfree = t + n.ins[-1].passes * 4
            t += n.cost
            for c2, l in n.succs.items():
                c2.est = max(c2.est, n.t + l); c2.np -= 1
                if c2.np == 0: ready.append(c2)
            done += 1
        assert done == len(s.nodes), "cycle"
        s.vmq, s.lgq, s.time = vmq, lgq, max(t, mfree)
        if verbose: print(f"region {s.name}: {len(out)} ins, model {s.time} cyc, waits {nwait}, idle {idle}, mfma {sum(n.mfma for n in s.nodes)}")
        return out

def states(i):
    if i.kind == "label": return 0
    if i.op == "s_nop": return int(i.text.split()[1]) + 1
    return 1

def required(p, c):
    need = 0
    pw = set(p.W); cr = set(c.R); cw = set(c.W)
    pv = p.kind in ("valu", "trans"); cv = c.kind in ("valu", "trans")
    if pv:
        raw = pw & cr
        vraw = [r for r in raw if r[0] in "va" and r != "vcc"]
        sraw = [r for r in raw if r[0] == "s" or r == "vcc"]
        if vraw:
            if c.kind == "mfma": need = max(need, 2)
            if cv and ("dpp" in c.op or "permlane" in c.op): need = max(need, 2)
            if cv and ("readlane" in c.op or "readfirstlane" in c.op): need = max(need, 1)
            if p.kind == "trans" and c.kind != "trans": need = max(need, 1)
        if sraw:
            if c.kind == "vm": need = max(need, 5)
            elif cv: need = max(need, 4 if "lane" in c.op else 2)
            else: need = max(need, 1)
        if "exec" in pw: need = max(need, 5)
    if p.kind == "mfma":
        big = p.passes == 8
        if c.kind == "mfma":
            if pw & set(c.AB): need = max(need, 12 if big else 8)
            if pw & set(c.C) and c.C != p.W: need = max(need, 10 if big else 6)
        elif c.kind in ("valu", "trans", "vm", "ds"):
            if pw & (cr | cw): need = max(need, 12 if big else 8)
            if set(p.C) & cw: need = max(need, 7 if big else 3)
    if p.sdata and set(p.sdata) & cw: need = max(need, 2)
    if p.kind == "salu" and "m0" in pw and getattr(c, "dma", False): need = max(need, 1)
    return need

def pad_hazards(ins, verbose=False):
    out = []; nn = 0
    for c in ins:
        if c.kind != "label":
            d = 0; add = 0
            for p in reversed(out):
                if d >= 20: break
                add = max(add, required(p, c) - d)
                d += states(p)
            while add > 0:
                k = min(add, 16); out.append(Ins(f"s_nop {k-1}")); add -= k; nn += k
        out.append(c)
    if verbose: print(f"hazard nops: {nn} states")
    return out

_szcache = {}
def sizes(ins):
    todo = sorted({re.sub(r"\bL_\w+", "0", i.text) for i in ins if i.kind != "label"} - set(_szcache))
    if todo:
        src = '.amdgcn_target "amdgcn-amd-amdhsa--gfx950"\n.text\n' + "\n".join(todo) + "\n"
        r = subprocess.run(["llvm-mc", "-triple=amdgcn-amd-amdhsa", "-mcpu=gfx950", "-show-encoding"], input=src, capture_output=True, text=True)
        assert r.returncode == 0, r.stderr[:3000]
        enc = re.findall(r"encoding: \[([^\]]*)\]", r.stdout)
        assert len(enc) == len(todo)
        for t, e in zip(todo, enc): _szcache[t] = len(e.split(","))
    return [0 if i.kind == "label" else _szcache[re.sub(r"\bL_\w+", "0", i.text)] for i in ins]
```

```python
import sys
from sched import *

QF, KF, VF, A3 = 0, 2 << 20, 4 << 20, 6 << 20
GOFF = 15 << 20
FLAGS = GOFF + 65536
WS_SIZE = 16 << 20
SQ, SF = 3072, 3584
LOG2E = 1.4426950408889634
import struct
def f2u(x): return struct.unpack("<I", struct.pack("<f", x))[0]

sIDX, sWAVE, sXCD = "s3", "s26", "s27"
def srd(n): return f"s[{n}:{n+3}]"
SX, SW0, SW1, SW2, SBG, SBU, SWS = 28, 32, 36, 40, 44, 48, 52
sRB, sCG, sROT, sLX, sLW = "s56", "s57", "s58", "s59", "s60"
sQS, sOQ, sOV, sOHA, sOHB, sOG = "s66", "s67", "s68", "s69", "s70", "s71"
SK, SV, SWD, SWO, SOUT = 80, 84, 88, 92, 96
MASKS = list(range(28, 52, 2)) + list(range(72, 80, 2))
def accA(p, r): return (p * 2 + r) * 16
def accB(p, r): return 96 + (p * 2 + r) * 16
def wfrag(buf, p): return 160 + buf * 12 + p * 4
vXD = [196, 197, 198, 199]; vWQ = [200, 201]; vWF = [202, 203]; vXA = [204, 205, 206, 207]; vWA = [208, 209, 210]
vL16, vGO, vLANE = 211, 212, 213
def vr(b, n): return f"v[{b}:{b+n-1}]"
def ar(b, n): return f"a[{b}:{b+n-1}]"
def xfrag(c, s, r): return ((c * 4 + s) * 2 + r) * 4

def build_srd(R, n, lo, hi, off, size):
    if off is None:
        R(f"s_mov_b32 s{n}, s{lo}"); R(f"s_mov_b32 s{n+1}, s{hi}")
    else:
        R([f"s_add_u32 s{n}, s{lo}, {off}", f"s_addc_u32 s{n+1}, s{hi}, 0"])
    if isinstance(size, tuple): R(f"s_sub_u32 s{n+2}, {size[0]}, {size[1]}")
    else: R(f"s_mov_b32 s{n+2}, {size}")
    R(f"s_mov_b32 s{n+3}, 0x20000")

def prologue_common(R):
    R(["s_load_dwordx16 s[4:19], s[0:1], 0", "s_load_dwordx4 s[20:23], s[0:1], 64", "s_load_dwordx2 s[24:25], s[0:1], 80"], lat=0)
    R(f"v_lshrrev_b32 v1, 6, v0")
    R(f"v_readfirstlane_b32 {sWAVE}, v1")
    R(f"v_and_b32 v{vLANE}, 63, v0")
    R(f"v_lshlrev_b32 v{vL16}, 4, v{vLANE}")
    R(f"s_and_b32 {sXCD}, s2, 7")
    R(f"s_lshr_b32 {sIDX}, s2, 3")
    R("s_waitcnt lgkmcnt(0)", R=[f"s{i}" for i in range(4, 26)], W=[f"s{i}" for i in range(4, 26)])

def p1_setup(R, rotmode):
    T = "s62"; T2 = "s63"
    R(f"s_and_b32 {T}, {sXCD}, 1"); R(f"s_lshl_b32 {T}, {T}, 3"); R(f"s_and_b32 {T2}, {sIDX}, 7"); R(f"s_add_u32 {sRB}, {T}, {T2}")
    R(f"s_lshr_b32 {T}, {sXCD}, 1"); R(f"s_lshl_b32 {T}, {T}, 2"); R(f"s_lshr_b32 {T2}, {sIDX}, 3"); R(f"s_add_u32 {sCG}, {T}, {T2}")
    if rotmode == 0: R(f"s_mov_b32 {sROT}, 0")
    elif rotmode == 2:
        R(f"s_lshr_b32 {T}, {sIDX}, 3"); R(f"s_add_u32 {T}, {T}, {sIDX}"); R(f"s_and_b32 {T}, {T}, 1"); R(f"s_lshl_b32 {sROT}, {T}, 2")
    elif rotmode == 4:
        R(f"s_lshr_b32 {T}, {sIDX}, 3"); R(f"s_add_u32 {T}, {T}, {sIDX}"); R(f"s_and_b32 {T}, {T}, 3"); R(f"s_lshl_b32 {sROT}, {T}, 1")
    elif rotmode == 8:
        R(f"s_lshr_b32 {T}, {sIDX}, 3"); R(f"s_lshl_b32 {T}, {T}, 1"); R(f"s_add_u32 {T}, {T}, {sIDX}"); R(f"s_and_b32 {sROT}, {T}, 7")
    R(f"s_lshl_b32 {sLX}, {sWAVE}, 12")
    R(f"s_mul_i32 {sLW}, {sWAVE}, 6144"); R(f"s_add_u32 {sLW}, {sLW}, 16384")
    R(f"s_lshl_b32 {T}, {sRB}, 17"); build_srd(R, SX, 4, 5, T, 131072)
    R(f"s_lshl_b32 s64, {sCG}, 7"); build_srd(R, SW0, 6, 7, "s64", (512 * SQ, "s64"))
    L = f"v{vLANE}"
    R(f"v_lshrrev_b32 v2, 3, {L}")
    R(f"v_and_b32 v3, 7, {L}")
    R(f"v_lshrrev_b32 v4, 4, {L}")
    R(f"v_xor_b32 v5, v3, v4"); R(f"v_lshlrev_b32 v5, 4, v5")
    R(f"s_lshl_b32 s65, {sWAVE}, 5"); R(f"v_add_u32 v6, s65, v2")
    R(f"v_lshl_add_u32 v{vXD[0]}, v6, 10, v5")
    R(f"v_xor_b32 v7, 64, v{vXD[0]}")
    R(f"v_add_u32 v{vXD[1]}, 7168, v7"); R(f"v_add_u32 v{vXD[2]}, {2*7168}, v{vXD[0]}"); R(f"v_add_u32 v{vXD[3]}, {3*7168}, v7")
    R(f"v_and_b32 v8, 1, v4"); R(f"v_lshlrev_b32 v8, 2, v8"); R(f"v_xor_b32 v8, v3, v8"); R(f"v_lshlrev_b32 v8, 4, v8")
    R(f"s_lshl_b32 s61, {sWAVE}, 4"); R(f"v_add_u32 v9, s61, v2")
    R(f"v_mul_u32_u24 v10, {SQ}, v9"); R(f"v_add_u32 v{vWQ[0]}, v10, v8"); R(f"v_add_u32 v{vWQ[1]}, {8*SQ-1024}, v{vWQ[0]}")
    R(f"v_mul_u32_u24 v11, {SF}, v9"); R(f"v_add_u32 v{vWF[0]}, v11, v8"); R(f"v_add_u32 v{vWF[1]}, {8*SF-1024}, v{vWF[0]}")

def p1_setup_type(R, typ):
    T = "s62"; T2 = "s63"
    if typ == "A":
        R(f"s_lshr_b32 {T}, {sCG}, 2"); R(f"s_mul_i32 {T}, {T}, 3"); R(f"s_and_b32 {T2}, {sCG}, 3"); R(f"s_add_u32 {T}, {T}, {T2}"); R(f"s_add_u32 s72, {T}, 16")
        R(f"s_lshl_b32 s73, s72, 7")
        build_srd(R, SW1, 12, 13, "s73", (512 * SF, "s73")); build_srd(R, SW2, 14, 15, "s73", (512 * SF, "s73"))
    else:
        R(f"s_lshr_b32 s72, {sCG}, 2"); R(f"s_lshl_b32 {T}, s72, 8"); R(f"s_add_u32 s73, {T}, 2048"); R(f"s_add_u32 s74, {T}, {2048+128}")
        build_srd(R, SW1, 6, 7, "s73", (512 * SQ, "s73")); build_srd(R, SW2, 6, 7, "s74", (512 * SQ, "s74"))

def p1_setup_late(R, typ):
    L = f"v{vLANE}"; T = "s100"; T2 = "s101"
    R(f"s_lshl_b32 s75, {sCG}, 7")
    build_srd(R, SBG, 12, 13, "s75", (512 * SF, "s75")); build_srd(R, SBU, 14, 15, "s75", (512 * SF, "s75"))
    build_srd(R, SWS, 24, 25, None, WS_SIZE)
    R(f"v_and_b32 v2, 31, {L}"); R(f"v_lshrrev_b32 v3, 5, {L}")
    R(f"v_bfe_u32 v4, {L}, 1, 3")
    R(f"s_lshr_b32 s76, {sWAVE}, 1"); R(f"s_and_b32 s77, {sWAVE}, 1")
    R(f"s_lshl_b32 {T}, s76, 13"); R(f"v_lshl_add_u32 v5, v2, 7, {T}")
    for s in range(4):
        R(f"v_add_u32 v6, {2*s}, v3"); R(f"v_xor_b32 v6, v6, v4"); R(f"v_lshl_add_u32 v{vXA[s]}, v6, 4, v5")
    R(f"v_bfe_u32 v7, {L}, 2, 2")
    R(f"v_lshl_add_u32 v8, v3, 3, v7"); R(f"v_lshlrev_b32 v8, 7, v8")
    R(f"v_lshrrev_b32 v9, 1, v7"); R(f"v_xor_b32 v9, s77, v9"); R(f"v_lshl_add_u32 v8, v9, 6, v8")
    R(f"v_bfe_u32 v10, {L}, 4, 1"); R(f"v_lshl_add_u32 v8, v10, 5, v8")
    R(f"v_and_b32 v11, 3, {L}"); R(f"v_lshl_add_u32 v{vWA[0]}, v11, 3, v8")
    R(f"v_add_u32 v{vWA[1]}, 0x10000, v{vWA[0]}"); R(f"v_add_u32 v{vWA[2]}, 0x20000, v{vWA[0]}")
    R(f"s_lshl_b32 {T}, {sRB}, 2"); R(f"s_lshl_b32 {T2}, s76, 1"); R(f"s_add_u32 s78, {T}, {T2}")
    R(f"s_lshl_b32 {T}, {sCG}, 1"); R(f"s_add_u32 {T}, {T}, s77"); R(f"s_lshl_b32 {T}, {T}, 17"); R(f"s_lshl_b32 {T2}, s78, 10"); R(f"s_add_u32 {sOQ}, {T}, {T2}")
    R([f"s_cmp_lt_u32 {sCG}, 8", f"s_cselect_b32 {sQS}, {hex(f2u(0.25*LOG2E))}, 1.0"])
    R(f"s_mul_i32 s79, s78, {144*1024}"); R(f"s_add_u32 s79, s79, {A3}"); R(f"s_lshl_b32 {T}, s77, 11"); R(f"s_add_u32 s79, s79, {T}")
    R(f"s_lshl_b32 {T}, {sCG}, 12"); R(f"s_add_u32 {sOHB}, s79, {T}")
    if typ == "A":
        R(f"s_lshl_b32 {T}, s72, 12"); R(f"s_add_u32 {sOHA}, s79, {T}")
    else:
        R(f"s_lshl_b32 {T}, s72, 2"); R(f"s_add_u32 {T}, {T}, s77"); R(f"s_lshl_b32 {T}, {T}, 17"); R(f"s_lshl_b32 {T2}, s78, 11")
        R(f"s_add_u32 {T}, {T}, {T2}"); R(f"s_add_u32 {sOV}, {T}, {VF}")

def dmaA(R, typ, c, dep=(), prio=0):
    reg = (c % 4) * 40960
    k = f"s{4+(c%2)*4}"; ox = f"s{5+(c%2)*4}"; oq = f"s{6+(c%2)*4}"; of = f"s{7+(c%2)*4}"
    k, ox, oq, of = [f"s{62+i}" for i in range(4)]
    R(f"s_add_u32 {k}, {sROT}, {c}"); R(f"s_and_b32 {k}, {k}, 7")
    R(f"s_lshl_b32 {ox}, {k}, 7"); R(f"s_mul_i32 {oq}, {k}, {64*SQ}")
    if typ == "A": R(f"s_mul_i32 {of}, {k}, {64*SF}")
    pend = []
    R(f"s_add_u32 m0, {sLX}, {reg}", R=dep)
    for i in range(4):
        p = f"@pA{c}.x{i}"; pend.append(p)
        R(f"buffer_load_dwordx4 v{vXD[i]}, {srd(SX)}, {ox} offen offset:{i*1024} lds", W=[p], lat=600, prio=prio)
    for pn, (sr, va, so) in enumerate([(SW0, vWQ, oq)] + ([(SW1, vWF, of), (SW2, vWF, of)] if typ == "A" else [(SW1, vWQ, oq), (SW2, vWQ, oq)])):
        R(f"s_add_u32 m0, {sLW}, {reg + pn*2048}")
        for i in range(2):
            p = f"@pA{c}.w{pn}{i}"; pend.append(p)
            R(f"buffer_load_dwordx4 v{va[i]}, {srd(sr)}, {so} offen offset:{i*1024} lds", W=[p], lat=600, prio=prio)
    return pend

def regB(c): return (c >> 1) * 40960 + (c & 1) * 16384
def dmaB(R, c, dep=(), prio=0):
    k, of = "s62", "s65"
    R(f"s_add_u32 {k}, {sROT}, {c}"); R(f"s_and_b32 {k}, {k}, 7"); R(f"s_mul_i32 {of}, {k}, {64*SF}")
    pend = []
    for pn, sr in enumerate([SBG, SBU]):
        R(f"s_add_u32 m0, {sLX}, {regB(c) + pn*2048}", R=dep)
        for i in range(2):
            p = f"@pB{c}.w{pn}{i}"; pend.append(p)
            R(f"buffer_load_dwordx4 v{vWF[i]}, {srd(sr)}, {of} offen offset:{i*1024} lds", W=[p], lat=600, prio=prio)
    return pend

def trread(R, dst, off, dep):
    for hf in range(2):
        o = off + hf * 512
        R(f"ds_read_b64_tr_b16 {vr(dst+2*hf, 2)}, v{vWA[o >> 16]} offset:{o & 0xffff}", R=dep)

def gate_loads(R):
    b = 96
    R(f"s_lshl_b32 s100, {sCG}, 2"); R(f"s_add_u32 s100, s100, {sWAVE}"); R(f"s_lshl_b32 s100, s100, 11")
    R(f"buffer_load_dwordx4 {vr(b,4)}, v{vL16}, {srd(SX)}, s100 offen", lat=3000)
    R(f"buffer_load_dwordx4 {vr(b+4,4)}, v{vL16}, {srd(SX)}, s100 offen offset:1024", lat=3000)
    R(f"global_load_dwordx4 {vr(b+8,4)}, v{vL16}, s[18:19]", lat=3000)

def gate_compute(R, fl):
    b = 96; w = b + 12; t = b + 20; sA, sB = b + 24, b + 25
    for i in range(4):
        R(f"v_lshlrev_b32 v{w+2*i}, 16, v{b+8+i}"); R(f"v_and_b32 v{w+2*i+1}, 0xffff0000, v{b+8+i}")
    for rr, acc in ((0, sA), (1, sB)):
        for i in range(4):
            x = b + rr * 4 + i
            R(f"v_lshlrev_b32 v{t+rr*2}, 16, v{x}"); R(f"v_and_b32 v{t+rr*2+1}, 0xffff0000, v{x}")
            if i == 0: R(f"v_mul_f32 v{acc}, v{t+rr*2}, v{w}")
            else: R(f"v_fmac_f32 v{acc}, v{t+rr*2}, v{w+2*i}")
            R(f"v_fmac_f32 v{acc}, v{t+rr*2+1}, v{w+2*i+1}")
    R(f"v_permlane32_swap_b32 v{sA}, v{sB}")
    R(f"v_add_f32 v{sA}, v{sA}, v{sB}")
    for sh in (1, 2, 4, 8):
        R(f"v_add_f32_dpp v{sA}, v{sA}, v{sA} row_shr:{sh} row_mask:0xf bank_mask:0xf bound_ctrl:1")
    R(f"v_add_f32_dpp v{sA}, v{sA}, v{sA} row_bcast:15 row_mask:0xa bank_mask:0xf")
    R(f"v_mul_f32 v{sA}, {hex(f2u(-LOG2E))}, v{sA}"); R(f"v_exp_f32 v{sA}, v{sA}"); R(f"v_add_f32 v{sA}, 1.0, v{sA}"); R(f"v_rcp_f32 v{vGO+2}, v{sA}")
    R(f"v_and_b32 v{t}, 31, v{vLANE}"); R(f"v_lshrrev_b32 v{t+1}, 5, v{vLANE}"); R(f"v_lshlrev_b32 v{t+1}, 2, v{t+1}"); R(f"v_mov_b32 v{t+2}, 0x7ffffff0")
    R([f"v_cmp_eq_u32 vcc, 31, v{t}", "s_nop 1", f"v_cndmask_b32 v{vGO}, v{t+2}, v{t+1}, vcc"])
    R(f"s_lshl_b32 s100, {sRB}, 4"); R(f"s_add_u32 s100, s100, {sCG}"); R(f"s_lshl_b32 s100, s100, 2"); R(f"s_add_u32 s100, s100, {sWAVE}")
    R(f"s_lshl_b32 s100, s100, 3"); R(f"s_add_u32 {sOG}, s100, {GOFF}")
    R(f"buffer_store_dword v{vGO+2}, v{vGO}, {srd(SWS)}, {sOG} offen {fl}", W=["@stG"])
    return ["@stG"]

def epi_qk(R, fl, prio):
    st = []
    for r in range(2):
        a = accA(0, r)
        for e in range(16): R(f"v_mul_f32 v{a+e}, {sQS}, v{a+e}", prio=prio)
        for k in range(8): R(f"v_cvt_pk_bf16_f32 v{a+k}, v{a+2*k}, v{a+2*k+1}", prio=prio)
        for hd in range(2):
            sr = f"s{4+r*2+hd}"
            R(f"s_add_u32 {sr}, {sOQ}, {hd*65536 + r*1024}")
            p = f"@stQ{r}{hd}"; st.append(p)
            R(f"buffer_store_dwordx4 {vr(a+4*hd,4)}, v{vL16}, {srd(SWS)}, {sr} offen {fl}", W=[p], prio=prio)
    return st

def epi_v(R, fl, prio):
    st = []
    for p in (1, 2):
        for r in range(2):
            a = accA(p, r)
            for k in range(8): R(f"v_cvt_pk_bf16_f32 v{a+k}, v{a+2*k}, v{a+2*k+1}", prio=prio)
            sr = f"s{8+(p-1)*2+r}"
            R(f"s_add_u32 {sr}, {sOV}, {(p-1)*2*131072 + r*2048}")
            for f in range(2):
                q = f"@stV{p}{r}{f}"; st.append(q)
                R(f"buffer_store_dwordx4 {vr(a+4*f,4)}, v{vL16}, {srd(SWS)}, {sr} offen offset:{f*1024} {fl}", W=[q], prio=prio)
    return st

def epi_swiglu(R, G, U, so, tmp, fl, nm):
    st = []
    for r in range(2):
        g, u = G(r), U(r)
        for e in range(16):
            R(f"v_mul_f32 v{u+e}, v{g+e}, v{u+e}")
            R(f"v_mul_f32 v{g+e}, {hex(f2u(-LOG2E))}, v{g+e}")
            R(f"v_exp_f32 v{g+e}, v{g+e}")
            R(f"v_add_f32 v{g+e}, 1.0, v{g+e}")
            R(f"v_rcp_f32 v{g+e}, v{g+e}")
            R(f"v_mul_f32 v{u+e}, v{u+e}, v{g+e}")
            if e & 1: R(f"v_cvt_pk_bf16_f32 v{g+e//2}, v{u+e-1}, v{u+e}")
        sr = f"s{tmp+r}"
        R(f"s_add_u32 {sr}, {so}, {r*144*1024}")
        for f in range(2):
            q = f"@stH{nm}{r}{f}"; st.append(q)
            R(f"buffer_store_dwordx4 {vr(g+4*f,4)}, v{vL16}, {srd(SWS)}, {sr} offen offset:{f*1024} {fl}", W=[q])
    return st

def phase1(R, typ, fl):
    M = "v_mfma_f32_32x32x16_bf16"
    p1_setup_type(R, typ)
    pend = {}
    pend[0] = dmaA(R, typ, 0, prio=4000)
    gate_loads(R)
    for c in range(1, 4): pend[c] = dmaA(R, typ, c, prio=3000)
    p1_setup_late(R, typ)
    stG = gate_compute(R, fl)
    R("s_barrier", R=pend[0] + ["@bar"], W=["@rA0", "@bar"])
    pendB = {}
    step = 0
    for c in range(8):
        reg = (c % 4) * 40960
        if c in (2, 6):
            for s in range(4): R(f"v_add_u32 v{vXA[s]}, 81920, v{vXA[s]}")
        if c == 4:
            for s in range(4): R(f"v_subrev_u32 v{vXA[s]}, 81920, v{vXA[s]}")
        for s in range(4):
            buf = step % 3; step += 1
            for r in range(2):
                R(f"ds_read_b128 {ar(xfrag(c,s,r),4)}, v{vXA[s]} offset:{(reg % 81920) + r*4096}", R=[f"@rA{c}"])
            for p in range(3): trread(R, wfrag(buf, p), reg + 16384 + s * 6144 + p * 2048, [f"@rA{c}"])
            if s == 3:
                if c < 7: R("s_barrier", R=pend[c+1] + ["@bar"], W=[f"@rA{c}", f"@rA{c+1}", f"@f{c}", "@bar"])
                else: R("s_barrier", R=pendB[0] + pendB[1] + ["@bar"], W=[f"@rA{c}", "@rB0", "@rB1", f"@f{c}", "@bar"])
                if c < 4: pend[c+4] = dmaA(R, typ, c + 4, dep=[f"@f{c}"], prio=1000)
                else:
                    for cb in (2*(c-4), 2*(c-4)+1): pendB[cb] = dmaB(R, cb, dep=[f"@f{c}"], prio=1000)
            for p in range(3):
                for r in range(2):
                    a = vr(accA(p, r), 16); w = vr(wfrag(buf, p), 4); x = ar(xfrag(c, s, r), 4)
                    cin = "0" if (c == 0 and s == 0) else a
                    if typ == "B" and p > 0: R(f"{M} {a}, {x}, {w}, {cin}")
                    else: R(f"{M} {a}, {w}, {x}, {cin}")
    stQ = epi_qk(R, fl, 2000) + stG
    stH = []
    if typ == "B": stQ += epi_v(R, fl, 2000)
    else: stH += epi_swiglu(R, lambda r: accA(1, r), lambda r: accA(2, r), sOHA, 8, fl, "A")
    for c in range(8):
        if c in (2, 4, 6):
            R("s_barrier", R=pendB[c] + pendB[c+1] + ["@bar"], W=[f"@rB{c}", f"@rB{c+1}", "@bar"])
        for s in range(4):
            buf = step % 3; step += 1
            for p in range(2): trread(R, wfrag(buf, p), regB(c) + s * 4096 + p * 2048, [f"@rB{c}"])
            for p in range(2):
                for r in range(2):
                    a = vr(accB(p, r), 16); w = vr(wfrag(buf, p), 4); x = ar(xfrag(c, s, r), 4)
                    cin = "0" if (c == 0 and s == 0) else a
                    R(f"{M} {a}, {w}, {x}, {cin}")
    stH += epi_swiglu(R, lambda r: accB(0, r), lambda r: accB(1, r), sOHB, 12, fl, "B")
    return stQ, stH

aK = lambda kb: kb * 4
aV = lambda kb, f: 40 + kb * 8 + f * 4
aQ = lambda j: 120 + j * 4
vS = [0, 16, 32]; vM = 48; vN = 64; vO = [80, 160]; vD = 176; vPM = 184; vMX = 192; vTM = 193; vGq = [194, 195]
vVA = 216; vKB = 217; vT = 218
sBLK = "s62"

def att_setup(R):
    L = f"v{vLANE}"; T, T2 = "s100", "s101"
    R(f"s_lshl_b32 {T}, {sXCD}, 2"); R(f"s_and_b32 {T2}, {sIDX}, 3"); R(f"s_add_u32 s63, {T}, {T2}")
    R(f"s_lshr_b32 {T}, {sIDX}, 2"); R(f"s_lshl_b32 {T}, {T}, 2"); R(f"s_add_u32 {T}, {T}, {sWAVE}"); R(f"s_lshl_b32 s64, {T}, 1")
    R(f"s_sub_u32 {sBLK}, s64, 8")
    R(f"s_lshl_b32 {T}, s63, 16"); R(f"s_add_u32 s65, {T}, {KF}"); build_srd(R, SK, 24, 25, "s65", 65536)
    R(f"s_lshl_b32 {T2}, s64, 10"); R(f"s_add_u32 s66, {T}, {T2}")
    R(f"s_lshr_b32 {T}, s63, 1"); R(f"s_lshl_b32 {T}, {T}, 17"); R(f"s_add_u32 s67, {T}, {VF}"); build_srd(R, SV, 24, 25, "s67", 131072)
    R(f"s_and_b32 {T}, s63, 1"); R(f"s_lshl_b32 {T}, {T}, 8")
    R(f"v_and_b32 v{vT}, 15, {L}"); R(f"v_lshrrev_b32 v{vT+1}, 5, {L}"); R(f"v_lshlrev_b32 v{vKB}, 9, v{vT+1}")
    R(f"v_lshl_add_u32 v{vT}, v{vT}, 4, {T}"); R(f"v_add_u32 v{vVA}, v{vT}, v{vKB}")
    R(f"s_mul_i32 s68, s64, {144*1024}"); R(f"s_add_u32 {T}, s63, 112"); R(f"s_lshl_b32 {T}, {T}, 10"); R(f"s_add_u32 s68, s68, {T}"); R(f"s_add_u32 s68, s68, {A3}")
    R(f"s_lshl_b32 {T}, s64, 7"); R(f"s_add_u32 s69, {T}, {GOFF}")
    R(f"v_and_b32 v{vT+2}, 31, {L}"); R(f"v_lshlrev_b32 v{vT+3}, 2, v{vT+2}")
    for r in range(16):
        jj, i = r // 4, r % 4
        R(f"s_mov_b32 s{MASKS[r]}, {hex((0xffffffff << (8*jj+i)) & 0xffffffff)}")
        R(f"s_mov_b32 s{MASKS[r]+1}, {hex((0xffffffff << (8*jj+4+i)) & 0xffffffff)}")
    R(f"v_mov_b32 v{vT+8}, 0x7ffffff0")
    R(f"v_mov_b32 v{vT+4}, 0xffff"); R(f"v_mov_b32 v{vT+5}, 0xffff0000")
    for k in range(8):
        m0, m1 = MASKS[2*k], MASKS[2*k+1]
        R(f"v_cndmask_b32 v{vPM+k}, 0, v{vT+4}, s[{m0}:{m0+1}]"); R(f"v_cndmask_b32 v{vT+6}, 0, v{vT+5}, s[{m1}:{m1+1}]")
        R(f"v_or_b32 v{vPM+k}, v{vPM+k}, v{vT+6}")

def att_loads(R, fl, dep=()):
    dep = list(dep)
    for j in range(2):
        R(f"buffer_load_dwordx4 {ar(aQ(j),4)}, v{vL16}, {srd(SWS)}, s66 offen offset:{j*1024} {fl}", R=dep)
    for kb in (0, 8, 1, 2, 3, 4, 5, 6, 7, 9):
        if kb < 8:
            R([f"s_add_i32 s100, {sBLK}, {kb}", "s_cmp_lt_i32 s100, 0", "s_cselect_b64 vcc, -1, 0", "s_cselect_b32 s100, 0, s100", "s_lshl_b32 s100, s100, 10",
               f"v_cndmask_b32 v{vT+7}, v{vL16}, v{vKB}, vcc",
               f"buffer_load_dwordx4 {ar(aK(kb),4)}, v{vT+7}, {srd(SK)}, s100 offen {fl}"], R=dep)
        else:
            R([f"s_add_i32 s100, {sBLK}, {kb}", "s_lshl_b32 s100, s100, 10", f"buffer_load_dwordx4 {ar(aK(kb),4)}, v{vL16}, {srd(SK)}, s100 offen {fl}"], R=dep)
    for j in range(2):
        R(f"buffer_load_dword v{vGq[j]}, v{vT+3}, {srd(SWS)}, s69 offen offset:{j*128} {fl}", R=dep)
    for kb in range(10):
        R([f"s_add_i32 s100, {sBLK}, {kb}", "s_cmp_lt_i32 s100, 0", "s_cselect_b32 s101, 0, 0x3f803f80"] +
          [f"v_accvgpr_write_b32 a{aV(kb,0)+i}, s101" for i in range(8)])
    g = ["s_mov_b32 exec_lo, 0xffff", "s_mov_b32 exec_hi, 0xffff"]
    for kb in (0, 8, 1, 2, 3, 4, 5, 6, 7, 9):
        if kb < 8:
            g += [f"s_add_i32 s100, {sBLK}, {kb}", "s_cmp_lt_i32 s100, 0", "s_cselect_b64 vcc, -1, 0", "s_cselect_b32 s100, 0, s100", "s_lshl_b32 s100, s100, 11",
                  f"v_cndmask_b32 v{vT+7}, v{vVA}, v{vT+8}, vcc"]
            va = vT + 7
        else:
            g += [f"s_add_i32 s100, {sBLK}, {kb}", "s_lshl_b32 s100, s100, 11"]; va = vVA
        g += [f"buffer_load_dwordx4 {ar(aV(kb,f),4)}, v{va}, {srd(SV)}, s100 offen offset:{f*1024} {fl}" for f in range(2)]
    g += ["s_mov_b64 exec, -1"]
    R(g, R=dep)

def attention(R, fl):
    M = "v_mfma_f32_32x32x16_bf16"
    st = []; sb = 0
    def nxt():
        nonlocal sb
        b = vS[sb % 3]; sb += 1; return b
    mf = dict(crit=False)
    for j in range(2):
        Q = ar(aQ(j), 4)
        b0, b1 = nxt(), nxt()
        R(f"{M} {vr(b0,16)}, {ar(aK(j),4)}, {Q}, 0", **mf); R(f"{M} {vr(b1,16)}, {ar(aK(j+8),4)}, {Q}, 0", **mf)
        for r in range(16): R(f"v_cndmask_b32 v{vM+r}, v{b0+r}, v{b1+r}, s[{MASKS[r]}:{MASKS[r]+1}]")
        R(f"v_max3_f32 v{vMX}, v{vM}, v{vM+1}, v{vM+2}")
        for k in range(6): R(f"v_max3_f32 v{vMX}, v{vMX}, v{vM+3+2*k}, v{vM+4+2*k}")
        R(f"v_max_f32 v{vMX}, v{vMX}, v{vM+15}")
        for kb in range(j + 1, j + 8):
            b = nxt()
            R(f"{M} {vr(b,16)}, {ar(aK(kb),4)}, {Q}, 0", **mf)
            for k in range(8): R(f"v_max3_f32 v{vMX}, v{vMX}, v{b+2*k}, v{b+2*k+1}")
        R(f"v_mov_b32 v{vTM}, v{vMX}"); R(f"v_permlane32_swap_b32 v{vMX}, v{vTM}"); R(f"v_max_f32 v{vMX}, v{vMX}, v{vTM}")
        for r in range(16): R(f"v_sub_f32 v{vN+r}, 0, v{vMX}")
        O = vr(vO[j], 16)
        for r in range(16):
            R(f"v_sub_f32 v{vM+r}, v{vM+r}, v{vMX}"); R(f"v_exp_f32 v{vM+r}, v{vM+r}")
            if r & 1:
                k = r // 2
                R(f"v_cvt_pk_bf16_f32 v{vM+k}, v{vM+r-1}, v{vM+r}")
                R(f"v_and_b32 v{vD+k}, v{vPM+k}, v{vM+k}"); R(f"v_bfi_b32 v{vM+k}, v{vPM+k}, 0, v{vM+k}")
        R(f"{M} {O}, {ar(aV(j,0),4)}, {vr(vM,4)}, 0", **mf); R(f"{M} {O}, {ar(aV(j,1),4)}, {vr(vM+4,4)}, {O}", **mf)
        R(f"{M} {O}, {ar(aV(j+8,0),4)}, {vr(vD,4)}, {O}", **mf); R(f"{M} {O}, {ar(aV(j+8,1),4)}, {vr(vD+4,4)}, {O}", **mf)
        for kb in range(j + 1, j + 8):
            b = nxt()
            R(f"{M} {vr(b,16)}, {ar(aK(kb),4)}, {Q}, {vr(vN,16)}", **mf)
            for r in range(16):
                R(f"v_exp_f32 v{b+r}, v{b+r}")
                if r & 1: R(f"v_cvt_pk_bf16_f32 v{b+r//2}, v{b+r-1}, v{b+r}")
            R(f"{M} {O}, {ar(aV(kb,0),4)}, {vr(b,4)}, {O}", **mf); R(f"{M} {O}, {ar(aV(kb,1),4)}, {vr(b+4,4)}, {O}", **mf)
        o = vO[j]
        R(f"v_rcp_f32 v{o+8}, v{o+8}"); R(f"v_mul_f32 v{o+8}, v{o+8}, v{vGq[j]}")
        for e in range(8): R(f"v_mul_f32 v{o+e}, v{o+e}, v{o+8}")
        for k in range(4): R(f"v_cvt_pk_bf16_f32 v{o+k}, v{o+2*k}, v{o+2*k+1}")
        R(f"s_add_u32 s{4+j}, s68, {j*144*1024}")
        p = f"@stO{j}"; st.append(p)
        R(f"buffer_store_dwordx4 {vr(o,4)}, v{vL16}, {srd(SWS)}, s{4+j} offen {fl}", W=[p])
    return st

def acc3(cb, r): return 96 + (cb * 2 + r) * 16
v3D = [227, 228]; v3A = [229, 230]; v3G = [231, 232]; v3O = 233; v3X = 234; v3T = 235; v3R = [196, 197, 198]
def w3frag(buf, cb): return 240 + buf * 8 + cb * 4
NSLOT = 20
def p3_setup(R):
    L = f"v{vLANE}"; T, T2 = "s100", "s101"; t = v3T
    R(f"s_lshl_b32 {T}, {sXCD}, 2"); R(f"s_and_b32 {T2}, {sIDX}, 3"); R(f"s_add_u32 s12, {T}, {T2}")
    R(f"s_lshr_b32 s13, {sIDX}, 2"); R(f"s_lshl_b32 s14, s13, 7")
    build_srd(R, SWD, 16, 17, "s14", (1792 * 1024, "s14")); build_srd(R, SWO, 8, 9, "s14", (512 * 1024, "s14"))
    R(f"s_lshl_b32 {T}, s12, 16"); R(f"s_add_u32 s15, {T}, s14"); build_srd(R, SOUT, 20, 21, "s15", (2048 * 1024, "s15"))
    R(f"s_lshr_b32 s20, {sWAVE}, 1"); R(f"s_and_b32 s21, {sWAVE}, 1")
    R(f"s_lshl_b32 {T}, s12, 1"); R(f"s_add_u32 {T}, {T}, s20"); R(f"s_mul_i32 s16, {T}, {144*1024}"); R(f"s_add_u32 s16, s16, {A3}")
    R([f"s_mov_b32 s15, {144*1024}", f"s_cmp_eq_u32 s20, 0", f"s_cselect_b32 s15, s15, {hex((-144*1024) & 0xffffffff)}"])
    R(f"s_mul_i32 s17, {sWAVE}, 40960")
    R(f"s_mul_i32 s18, {sWAVE}, 28")
    R(f"s_add_u32 s19, s18, 28")
    R(f"s_and_b32 {T}, {sIDX}, 3"); R(f"s_mul_i32 {T}, {T}, 7"); R(f"s_mul_i32 {T2}, s13, 3"); R(f"s_add_u32 {T}, {T}, {T2}")
    R([f"s_cmp_ge_u32 {T}, 28", f"s_cselect_b32 {T2}, 28, 0", f"s_sub_u32 {T}, {T}, {T2}"])
    R(f"s_add_u32 s10, s18, {T}"); R(f"s_add_u32 s8, s18, {T}")
    R(f"v_lshrrev_b32 v{t}, 3, {L}"); R(f"v_and_b32 v{t+1}, 7, {L}"); R(f"v_bfe_u32 v{t+2}, {L}, 4, 1"); R(f"v_lshlrev_b32 v{t+2}, 2, v{t+2}")
    R(f"v_xor_b32 v{t+1}, v{t+1}, v{t+2}"); R(f"v_lshlrev_b32 v{t+1}, 4, v{t+1}"); R(f"v_lshl_add_u32 v{v3D[0]}, v{t}, 10, v{t+1}")
    R(f"v_add_u32 v{v3D[1]}, 7168, v{v3D[0]}")
    R(f"v_lshrrev_b32 v{t}, 5, {L}"); R(f"v_bfe_u32 v{t+1}, {L}, 2, 2"); R(f"v_lshl_add_u32 v{t}, v{t}, 2, v{t+1}"); R(f"v_lshl_add_u32 v{t}, v{t}, 7, s17")
    R(f"v_lshrrev_b32 v{t+1}, 1, v{t+1}"); R(f"v_xor_b32 v{t+1}, s21, v{t+1}"); R(f"v_lshl_add_u32 v{t}, v{t+1}, 6, v{t}")
    R(f"v_bfe_u32 v{t+2}, {L}, 4, 1"); R(f"v_lshl_add_u32 v{t}, v{t+2}, 5, v{t}"); R(f"v_and_b32 v{t+2}, 3, {L}")
    R(f"v_lshl_add_u32 v{v3A[0]}, v{t+2}, 3, v{t}"); R(f"v_xor_b32 v{v3A[1]}, 64, v{v3A[0]}")
    R(f"v_and_b32 v{t}, 31, {L}"); R(f"v_lshrrev_b32 v{t+1}, 5, {L}"); R(f"v_lshlrev_b32 v{t+1}, 4, v{t+1}"); R(f"v_lshl_add_u32 v{v3O}, v{t}, 10, v{t+1}")
    R(f"v_lshlrev_b32 v{t+3}, 2, v{t}")
    R(f"s_lshl_b32 {T}, s12, 8"); R(f"s_lshl_b32 {T2}, s20, 7"); R(f"s_add_u32 {T}, {T}, {T2}"); R(f"s_add_u32 s11, {T}, {GOFF}"); R(f"s_xor_b32 s14, s11, 128")
    R(f"v_add_u32 v{v3X}, s17, v{vL16}")
    for j in (1, 2, 3):
        R(f"s_xor_b32 {T}, {sWAVE}, {j}"); R(f"s_mul_i32 {T}, {T}, 40960"); R(f"v_add_u32 v{v3R[j-1]}, {T}, v{vL16}")
    R(f"s_lshl_b32 {T}, s20, 15"); R(f"s_lshl_b32 {T2}, s21, 6"); R(f"s_add_u32 s9, {T}, {T2}")

def phase3(R, fl, areg, depW=(), depH=(), depO=(), depG=()):
    M = "v_mfma_f32_32x32x16_bf16"
    for r in range(2):
        R(f"buffer_load_dword v{v3G[r]}, v{v3T+3}, {srd(SWS)}, {'s11' if r == 0 else 's14'} offen {fl}", R=list(depG), lat=2000)
        R(f"v_sub_f32 v{v3G[r]}, 1.0, v{v3G[r]}")
    nA = len(areg)
    for i in range(36):
        slot = i % NSLOT
        sw, sa = "s6", "s7"
        if i < 28:
            R([f"s_add_u32 m0, s17, {slot*2048}", f"s_lshl_b32 {sw}, s10, 14",
               f"buffer_load_dwordx4 v{v3D[0]}, {srd(SWD)}, {sw} offen lds", f"buffer_load_dwordx4 v{v3D[1]}, {srd(SWD)}, {sw} offen offset:1024 lds",
               "s_add_u32 s10, s10, 1", "s_cmp_ge_u32 s10, s19", "s_cselect_b32 s10, s18, s10"], R=list(depW), W=[f"@s{slot}"])
        else:
            R([f"s_lshl_b32 {sw}, {sWAVE}, 17", f"s_add_u32 m0, s17, {slot*2048}", f"s_add_u32 {sw}, {sw}, {(i-28)*16384}",
               f"buffer_load_dwordx4 v{v3D[0]}, {srd(SWO)}, {sw} offen lds", f"buffer_load_dwordx4 v{v3D[1]}, {srd(SWO)}, {sw} offen offset:1024 lds"], R=list(depW), W=[f"@s{slot}"])
        ab = areg[i % nA]
        if i < 28:
            R([f"s_lshl_b32 {sa}, s8, 10", f"s_add_u32 {sa}, {sa}, s16", f"buffer_load_dwordx4 {ar(ab,4)}, v{vL16}, {srd(SWS)}, {sa} offen {fl}",
               f"s_add_u32 {sa}, {sa}, s15", f"buffer_load_dwordx4 {ar(ab+4,4)}, v{vL16}, {srd(SWS)}, {sa} offen {fl}",
               "s_add_u32 s8, s8, 1", "s_cmp_ge_u32 s8, s19", "s_cselect_b32 s8, s18, s8"], R=list(depH))
        else:
            R([f"s_lshl_b32 {sa}, {sWAVE}, 13", f"s_add_u32 {sa}, {sa}, s16", f"s_add_u32 {sa}, {sa}, {(112+i-28)*1024}",
               f"buffer_load_dwordx4 {ar(ab,4)}, v{vL16}, {srd(SWS)}, {sa} offen {fl}",
               f"s_add_u32 {sa}, {sa}, s15", f"buffer_load_dwordx4 {ar(ab+4,4)}, v{vL16}, {srd(SWS)}, {sa} offen {fl}"], R=list(depO))
        buf = i % 2
        for cb in range(2):
            for hf in range(2):
                R(f"ds_read_b64_tr_b16 {vr(w3frag(buf,cb)+2*hf,2)}, v{v3A[cb]} offset:{slot*2048 + hf*1024}", R=[f"@s{slot}"])
        if i == 28:
            for cb in range(2):
                for r in range(2):
                    for e in range(16): R(f"v_mul_f32 v{acc3(cb,r)+e}, v{acc3(cb,r)+e}, v{v3G[r]}")
        for cb in range(2):
            for r in range(2):
                a = vr(acc3(cb, r), 16)
                R(f"{M} {a}, {vr(w3frag(buf,cb),4)}, {ar(ab+4*r,4)}, {'0' if i == 0 else a}", crit=False)

def p3_final(R):
    blk = lambda j: acc3(j & 1, j >> 1)
    wr = []
    for j in (1, 2, 3):
        for q in range(4):
            p = f"@x{j}{q}"; wr.append(p)
            sl = (j * 4096 + q * 1024) // 2048
            R(f"ds_write_b128 v{v3X}, {vr(blk(j)+4*q,4)} offset:{j*4096+q*1024}", W=[p] + ([f"@s{sl}"] if q % 2 == 0 else []), R=[] if q % 2 == 0 else [f"@x{j}{q-1}o"])
            R.nodes[-1].W.add(p + "o")
    R("s_barrier", R=wr + ["@bar"], W=["@bar", "@xr"])
    me = blk(0)
    for j in (1, 2, 3):
        for q in range(4):
            R(f"ds_read_b128 {vr(16*(j-1)+4*q,4)}, v{v3R[j-1]} offset:{j*4096+q*1024}", R=["@xr"])
    for e in range(16):
        R(f"v_add_f32 v{me+e}, v{me+e}, v{e}"); R(f"v_add_f32 v{16+e}, v{16+e}, v{32+e}"); R(f"v_add_f32 v{me+e}, v{me+e}, v{16+e}")
    for k in range(8): R(f"v_cvt_pk_bf16_f32 v{me+k}, v{me+2*k}, v{me+2*k+1}")
    for pr in range(2):
        R(f"v_permlane32_swap_b32 v{me+4*pr}, v{me+4*pr+2}"); R(f"v_permlane32_swap_b32 v{me+4*pr+1}, v{me+4*pr+3}")
        R(f"buffer_store_dwordx4 {vr(me+4*pr,4)}, v{v3O}, {srd(SOUT)}, s9 offen offset:{pr*32}")

HEAD = open("gated_mix__sliding_block__swiglu_ffn__prompt.s.ref").read().split("; Override launch")[0]
def desc(name, vgpr=256, agpr=256):
    return f""".section .rodata,"a"
.p2align 6
.amdhsa_kernel {name}
  .amdhsa_next_free_vgpr {vgpr+agpr}
  .amdhsa_next_free_sgpr 102
  .amdhsa_accum_offset {vgpr}
  .amdhsa_group_segment_fixed_size 0
  .amdhsa_kernarg_size 88
  .amdhsa_user_sgpr_count 2
  .amdhsa_user_sgpr_kernarg_segment_ptr 1
  .amdhsa_system_sgpr_workgroup_id_x 1
.end_amdhsa_kernel
.text
"""
def kernel(name, ins):
    ins = pad_hazards(ins, True)
    print(name, "bytes", sum(sizes(ins)))
    return f".text\n.globl {name}\n.p2align 8\n.type {name},@function\n{name}:\n" + "\n".join(("" if i.kind == "label" else "  ") + i.text for i in ins) + "\n" + desc(name)

def split_version(rot=2, fl=""):
    LDS = 163840
    out = HEAD + "".join(f"; @launch kernel={k}_kernel grid=(256,1,1) block=(256,1,1) lds={LDS}\n" for k in ("p1", "p2", "p3"))
    out += '.amdgcn_target "amdgcn-amd-amdhsa--gfx950"\n'
    I = lambda *t: [Ins(x) for x in t]
    R = Region("p1pro"); prologue_common(R); p1_setup(R, rot)
    ins = I("s_cmp_ge_u32 s2, 256", "s_cbranch_scc1 L_end1") + R.schedule(verbose=True)
    ins += I(f"s_and_b32 s100, {sCG}, 3", "s_cmp_eq_u32 s100, 3", "s_cbranch_scc1 L_typeB")
    for typ in "AB":
        R = Region("p1" + typ); phase1(R, typ, fl)
        if typ == "B": ins += I("L_typeB:")
        ins += R.schedule(verbose=True) + I("s_endpgm")
    ins += I("L_end1:", "s_endpgm")
    out += kernel("p1_kernel", ins)
    R = Region("p2"); prologue_common(R); build_srd(R, SWS, 24, 25, None, WS_SIZE); att_setup(R); att_loads(R, fl); attention(R, fl)
    out += kernel("p2_kernel", I("s_cmp_ge_u32 s2, 256", "s_cbranch_scc1 L_end2") + R.schedule(verbose=True) + I("L_end2:", "s_endpgm"))
    R = Region("p3"); prologue_common(R); build_srd(R, SWS, 24, 25, None, WS_SIZE); p3_setup(R); phase3(R, fl, list(range(0, 160, 8))); p3_final(R)
    out += kernel("p3_kernel", I("s_cmp_ge_u32 s2, 256", "s_cbranch_scc1 L_end3") + R.schedule(verbose=True) + I("L_end3:", "s_endpgm"))
    return out

if __name__ == "__main__":
    open(sys.argv[1], "w").write(split_version())
```

```python
import sys
from sched import *

QF, KF, VF, A3 = 0, 2 << 20, 4 << 20, 6 << 20
GOFF = 15 << 20
FLAGS = GOFF + 65536
WS_SIZE = 16 << 20
SQ, SF = 3072, 3584
LOG2E = 1.4426950408889634
import struct
def f2u(x): return struct.unpack("<I", struct.pack("<f", x))[0]

sIDX, sWAVE, sXCD = "s3", "s26", "s27"
def srd(n): return f"s[{n}:{n+3}]"
SX, SW0, SW1, SW2, SBG, SBU, SWS = 28, 32, 36, 40, 44, 48, 52
sRB, sCG, sROT, sLX, sLW = "s56", "s57", "s58", "s59", "s60"
sQS, sOQ, sOV, sOHA, sOHB, sOG = "s66", "s67", "s68", "s69", "s70", "s71"
SK, SV, SWD, SWO, SOUT = 80, 84, 88, 92, 96
MASKS = list(range(28, 52, 2)) + list(range(72, 80, 2))
def accA(p, r): return (p * 2 + r) * 16
def accB(p, r): return 96 + (p * 2 + r) * 16
def wfrag(buf, p): return 160 + buf * 12 + p * 4
vXD = [196, 197, 198, 199]; vWQ = [200, 201]; vWF = [202, 203]; vXA = [204, 205, 206, 207]; vWA = [208, 209, 210]
vL16, vGO, vLANE = 211, 212, 213
def vr(b, n): return f"v[{b}:{b+n-1}]"
def ar(b, n): return f"a[{b}:{b+n-1}]"
def xfrag(c, s, r): return ((c * 4 + s) * 2 + r) * 4

def build_srd(R, n, lo, hi, off, size):
    if off is None:
        R(f"s_mov_b32 s{n}, s{lo}"); R(f"s_mov_b32 s{n+1}, s{hi}")
    else:
        R([f"s_add_u32 s{n}, s{lo}, {off}", f"s_addc_u32 s{n+1}, s{hi}, 0"])
    if isinstance(size, tuple): R(f"s_sub_u32 s{n+2}, {size[0]}, {size[1]}")
    else: R(f"s_mov_b32 s{n+2}, {size}")
    R(f"s_mov_b32 s{n+3}, 0x20000")

def prologue_common(R):
    R(["s_load_dwordx16 s[4:19], s[0:1], 0", "s_load_dwordx2 s[20:21], s[0:1], 64", "s_load_dwordx2 s[24:25], s[0:1], 80"], lat=0, prio=100000)
    R(f"v_lshrrev_b32 v1, 6, v0")
    R(f"v_readfirstlane_b32 {sWAVE}, v1")
    R(f"v_and_b32 v{vLANE}, 63, v0")
    R(f"v_lshlrev_b32 v{vL16}, 4, v{vLANE}")
    R(f"s_and_b32 {sXCD}, s2, 7")
    R(f"s_lshr_b32 {sIDX}, s2, 3")
    R("s_waitcnt lgkmcnt(0)", R=[f"s{i}" for i in range(4, 26) if i not in (22, 23)], W=[f"s{i}" for i in range(4, 26) if i not in (22, 23)])

STAMP = False
vST = 215
STOFF = 15*(1<<20) + 262144
_stn = [0]
def stamp(R, Rd=(), Wd=(), real=False):
    if not STAMP: return
    k = _stn[0]; _stn[0] += 1
    op = "s_memrealtime" if real else "s_memtime"
    R([f"{op} s[22:23]", "s_waitcnt lgkmcnt(0)", f"v_writelane_b32 v{vST}, s22, {k}"], R=list(Rd), W=list(Wd), prio=0)
def stamp_raw(real=False):
    if not STAMP: return []
    k = _stn[0]; _stn[0] += 1
    op = "s_memrealtime" if real else "s_memtime"
    return [Ins(x) for x in (f"{op} s[22:23]", "s_waitcnt lgkmcnt(0)", f"v_writelane_b32 v{vST}, s22, {k}")]
DBGWG = None
def stamp_store(kidx):
    if not STAMP: return []
    o = [Ins(x) for x in ("s_waitcnt vmcnt(0)",)] + stamp_raw() + stamp_raw(True) + [Ins(x) for x in (
        f"s_lshl_b32 s100, s2, 2", f"s_add_u32 s100, s100, {sWAVE}", "s_lshl_b32 s100, s100, 8", f"s_add_u32 s100, s100, {STOFF + kidx*262144}",
        f"v_lshlrev_b32 v214, 2, v{vLANE}", f"buffer_store_dword v{vST}, v214, {srd(SWS)}, s100 offen", "s_waitcnt vmcnt(0)")]
    if DBGWG is not None:
        lab = f"L_nodbg{len(_stn)}"; _stn.append(0)
        o += [Ins(x) for x in (f"s_cmp_lg_u32 s2, {DBGWG}", f"s_cbranch_scc1 {lab}", f"s_cmp_lg_u32 {sWAVE}, 0", f"s_cbranch_scc1 {lab}",
              "s_load_dwordx2 s[4:5], s[0:1], 72", "s_waitcnt lgkmcnt(0)", "s_mov_b32 s6, 64", "s_mov_b32 s7, 0x20000",
              f"v_readlane_b32 s8, v{vST}, 1", f"v_readlane_b32 s9, v{vST}, 0", f"v_readlane_b32 s10, v{vST}, {_stn[0]-1}", "s_sub_u32 s9, s10, s9",
              f"v_subrev_u32 v{vST}, s8, v{vST}", f"v_writelane_b32 v{vST}, s9, 2", "v_subrev_u32 v214, 8, v214",
              f"buffer_store_dword v{vST}, v214, s[4:7], 0 offen", "s_waitcnt vmcnt(0)", f"{lab}:")]
    return o

def p1_setup(R, rotmode):
    T = "s62"; T2 = "s63"
    R(f"s_and_b32 {T}, {sXCD}, 1"); R(f"s_lshl_b32 {T}, {T}, 3"); R(f"s_and_b32 {T2}, {sIDX}, 7"); R(f"s_add_u32 {sRB}, {T}, {T2}")
    R(f"s_lshr_b32 {T}, {sXCD}, 1"); R(f"s_lshl_b32 {T}, {T}, 2"); R(f"s_lshr_b32 {T2}, {sIDX}, 3"); R(f"s_add_u32 {sCG}, {T}, {T2}")
    if rotmode == 0: R(f"s_mov_b32 {sROT}, 0")
    elif rotmode == 2:
        R(f"s_lshr_b32 {T}, {sIDX}, 3"); R(f"s_add_u32 {T}, {T}, {sIDX}"); R(f"s_and_b32 {T}, {T}, 1"); R(f"s_lshl_b32 {sROT}, {T}, 2")
    elif rotmode == 4:
        R(f"s_lshr_b32 {T}, {sIDX}, 3"); R(f"s_add_u32 {T}, {T}, {sIDX}"); R(f"s_and_b32 {T}, {T}, 3"); R(f"s_lshl_b32 {sROT}, {T}, 1")
    elif rotmode == 8:
        R(f"s_lshr_b32 {T}, {sIDX}, 3"); R(f"s_lshl_b32 {T}, {T}, 1"); R(f"s_add_u32 {T}, {T}, {sIDX}"); R(f"s_and_b32 {sROT}, {T}, 7")
    R(f"s_lshl_b32 {sLX}, {sWAVE}, 12")
    R(f"s_mul_i32 {sLW}, {sWAVE}, 6144"); R(f"s_add_u32 {sLW}, {sLW}, 16384")
    R(f"s_lshl_b32 {T}, {sRB}, 17"); build_srd(R, SX, 4, 5, T, 131072)
    R(f"s_lshl_b32 s64, {sCG}, 7"); build_srd(R, SW0, 6, 7, "s64", (512 * SQ, "s64"))
    L = f"v{vLANE}"
    R(f"v_lshrrev_b32 v2, 3, {L}")
    R(f"v_and_b32 v3, 7, {L}")
    R(f"v_lshrrev_b32 v4, 4, {L}")
    R(f"v_xor_b32 v5, v3, v4"); R(f"v_lshlrev_b32 v5, 4, v5")
    R(f"s_lshl_b32 s65, {sWAVE}, 5"); R(f"v_add_u32 v6, s65, v2")
    R(f"v_lshl_add_u32 v{vXD[0]}, v6, 10, v5")
    R(f"v_xor_b32 v7, 64, v{vXD[0]}")
    R(f"v_add_u32 v{vXD[1]}, 7168, v7"); R(f"v_add_u32 v{vXD[2]}, {2*7168}, v{vXD[0]}"); R(f"v_add_u32 v{vXD[3]}, {3*7168}, v7")
    R(f"v_and_b32 v8, 1, v4"); R(f"v_lshlrev_b32 v8, 2, v8"); R(f"v_xor_b32 v8, v3, v8"); R(f"v_lshlrev_b32 v8, 4, v8")
    R(f"s_lshl_b32 s61, {sWAVE}, 4"); R(f"v_add_u32 v9, s61, v2")
    R(f"v_mul_u32_u24 v10, {SQ}, v9"); R(f"v_add_u32 v{vWQ[0]}, v10, v8"); R(f"v_add_u32 v{vWQ[1]}, {8*SQ-1024}, v{vWQ[0]}")
    R(f"v_mul_u32_u24 v11, {SF}, v9"); R(f"v_add_u32 v{vWF[0]}, v11, v8"); R(f"v_add_u32 v{vWF[1]}, {8*SF-1024}, v{vWF[0]}")

def p1_setup_type(R, typ):
    T = "s62"; T2 = "s63"
    if typ == "A":
        R(f"s_lshr_b32 {T}, {sCG}, 2"); R(f"s_mul_i32 {T}, {T}, 3"); R(f"s_and_b32 {T2}, {sCG}, 3"); R(f"s_add_u32 {T}, {T}, {T2}"); R(f"s_add_u32 s72, {T}, 16")
        R(f"s_lshl_b32 s73, s72, 7")
        build_srd(R, SW1, 12, 13, "s73", (512 * SF, "s73")); build_srd(R, SW2, 14, 15, "s73", (512 * SF, "s73"))
    else:
        R(f"s_lshr_b32 s72, {sCG}, 2"); R(f"s_lshl_b32 {T}, s72, 8"); R(f"s_add_u32 s73, {T}, 2048"); R(f"s_add_u32 s74, {T}, {2048+128}")
        build_srd(R, SW1, 6, 7, "s73", (512 * SQ, "s73")); build_srd(R, SW2, 6, 7, "s74", (512 * SQ, "s74"))

def p1_setup_late(R, typ):
    L = f"v{vLANE}"; T = "s100"; T2 = "s101"
    R(f"s_lshl_b32 s75, {sCG}, 7")
    build_srd(R, SBG, 12, 13, "s75", (512 * SF, "s75")); build_srd(R, SBU, 14, 15, "s75", (512 * SF, "s75"))
    build_srd(R, SWS, 24, 25, None, WS_SIZE)
    R(f"v_and_b32 v2, 31, {L}"); R(f"v_lshrrev_b32 v3, 5, {L}")
    R(f"v_bfe_u32 v4, {L}, 1, 3")
    R(f"s_lshr_b32 s76, {sWAVE}, 1"); R(f"s_and_b32 s77, {sWAVE}, 1")
    R(f"s_lshl_b32 {T}, s76, 13"); R(f"v_lshl_add_u32 v5, v2, 7, {T}")
    for s in range(4):
        R(f"v_add_u32 v6, {2*s}, v3"); R(f"v_xor_b32 v6, v6, v4"); R(f"v_lshl_add_u32 v{vXA[s]}, v6, 4, v5")
    R(f"v_bfe_u32 v7, {L}, 2, 2")
    R(f"v_lshl_add_u32 v8, v3, 3, v7"); R(f"v_lshlrev_b32 v8, 7, v8")
    R(f"v_lshrrev_b32 v9, 1, v7"); R(f"v_xor_b32 v9, s77, v9"); R(f"v_lshl_add_u32 v8, v9, 6, v8")
    R(f"v_bfe_u32 v10, {L}, 4, 1"); R(f"v_lshl_add_u32 v8, v10, 5, v8")
    R(f"v_and_b32 v11, 3, {L}"); R(f"v_lshl_add_u32 v{vWA[0]}, v11, 3, v8")
    R(f"v_add_u32 v{vWA[1]}, 0x10000, v{vWA[0]}"); R(f"v_add_u32 v{vWA[2]}, 0x20000, v{vWA[0]}")
    R(f"s_lshl_b32 {T}, {sRB}, 2"); R(f"s_lshl_b32 {T2}, s76, 1"); R(f"s_add_u32 s78, {T}, {T2}")
    R(f"s_lshl_b32 {T}, {sCG}, 1"); R(f"s_add_u32 {T}, {T}, s77"); R(f"s_lshl_b32 {T}, {T}, 17"); R(f"s_lshl_b32 {T2}, s78, 10"); R(f"s_add_u32 {sOQ}, {T}, {T2}")
    R([f"s_cmp_lt_u32 {sCG}, 8", f"s_cselect_b32 {sQS}, {hex(f2u(0.25*LOG2E))}, 1.0"])
    R(f"s_mul_i32 s79, s78, {144*1024}"); R(f"s_add_u32 s79, s79, {A3}"); R(f"s_lshl_b32 {T}, s77, 11"); R(f"s_add_u32 s79, s79, {T}")
    R(f"s_lshl_b32 {T}, {sCG}, 12"); R(f"s_add_u32 {sOHB}, s79, {T}")
    if typ == "A":
        R(f"s_lshl_b32 {T}, s72, 12"); R(f"s_add_u32 {sOHA}, s79, {T}")
    else:
        R(f"s_lshl_b32 {T}, s72, 2"); R(f"s_add_u32 {T}, {T}, s77"); R(f"s_lshl_b32 {T}, {T}, 17"); R(f"s_lshl_b32 {T2}, s78, 11")
        R(f"s_add_u32 {T}, {T}, {T2}"); R(f"s_add_u32 {sOV}, {T}, {VF}")

def dmaA(R, typ, c, dep=(), prio=0):
    reg = (c % 4) * 40960
    k = f"s{4+(c%2)*4}"; ox = f"s{5+(c%2)*4}"; oq = f"s{6+(c%2)*4}"; of = f"s{7+(c%2)*4}"
    k, ox, oq, of = [f"s{62+i}" for i in range(4)]
    R(f"s_add_u32 {k}, {sROT}, {c}"); R(f"s_and_b32 {k}, {k}, 7")
    R(f"s_lshl_b32 {ox}, {k}, 7"); R(f"s_mul_i32 {oq}, {k}, {64*SQ}")
    if typ == "A": R(f"s_mul_i32 {of}, {k}, {64*SF}")
    pend = []
    R(f"s_add_u32 m0, {sLX}, {reg}", R=dep)
    for i in range(4):
        p = f"@pA{c}.x{i}"; pend.append(p)
        R(f"buffer_load_dwordx4 v{vXD[i]}, {srd(SX)}, {ox} offen offset:{i*1024} lds", W=[p], lat=600, prio=prio)
    for pn, (sr, va, so) in enumerate([(SW0, vWQ, oq)] + ([(SW1, vWF, of), (SW2, vWF, of)] if typ == "A" else [(SW1, vWQ, oq), (SW2, vWQ, oq)])):
        R(f"s_add_u32 m0, {sLW}, {reg + pn*2048}")
        for i in range(2):
            p = f"@pA{c}.w{pn}{i}"; pend.append(p)
            R(f"buffer_load_dwordx4 v{va[i]}, {srd(sr)}, {so} offen offset:{i*1024} lds", W=[p], lat=600, prio=prio)
    return pend

def regB(c): return (c >> 1) * 40960 + (c & 1) * 16384
def dmaB(R, c, dep=(), prio=0):
    k, of = "s62", "s65"
    R(f"s_add_u32 {k}, {sROT}, {c}"); R(f"s_and_b32 {k}, {k}, 7"); R(f"s_mul_i32 {of}, {k}, {64*SF}")
    pend = []
    for pn, sr in enumerate([SBG, SBU]):
        R(f"s_add_u32 m0, {sLX}, {regB(c) + pn*2048}", R=dep)
        for i in range(2):
            p = f"@pB{c}.w{pn}{i}"; pend.append(p)
            R(f"buffer_load_dwordx4 v{vWF[i]}, {srd(sr)}, {of} offen offset:{i*1024} lds", W=[p], lat=600, prio=prio)
    return pend

def trread(R, dst, off, dep):
    for hf in range(2):
        o = off + hf * 512
        R(f"ds_read_b64_tr_b16 {vr(dst+2*hf, 2)}, v{vWA[o >> 16]} offset:{o & 0xffff}", R=dep)

def gate_loads(R):
    b = 96
    R(f"s_lshl_b32 s100, {sCG}, 2"); R(f"s_add_u32 s100, s100, {sWAVE}"); R(f"s_lshl_b32 s100, s100, 11")
    R(f"buffer_load_dwordx4 {vr(b,4)}, v{vL16}, {srd(SX)}, s100 offen", lat=3000)
    R(f"buffer_load_dwordx4 {vr(b+4,4)}, v{vL16}, {srd(SX)}, s100 offen offset:1024", lat=3000)
    R(f"global_load_dwordx4 {vr(b+8,4)}, v{vL16}, s[18:19]", lat=3000)

def gate_compute(R, fl):
    b = 96; w = b + 12; t = b + 20; sA, sB = b + 24, b + 25
    for i in range(4):
        R(f"v_lshlrev_b32 v{w+2*i}, 16, v{b+8+i}"); R(f"v_and_b32 v{w+2*i+1}, 0xffff0000, v{b+8+i}")
    for rr, acc in ((0, sA), (1, sB)):
        for i in range(4):
            x = b + rr * 4 + i
            R(f"v_lshlrev_b32 v{t+rr*2}, 16, v{x}"); R(f"v_and_b32 v{t+rr*2+1}, 0xffff0000, v{x}")
            if i == 0: R(f"v_mul_f32 v{acc}, v{t+rr*2}, v{w}")
            else: R(f"v_fmac_f32 v{acc}, v{t+rr*2}, v{w+2*i}")
            R(f"v_fmac_f32 v{acc}, v{t+rr*2+1}, v{w+2*i+1}")
    R(f"v_permlane32_swap_b32 v{sA}, v{sB}")
    R(f"v_add_f32 v{sA}, v{sA}, v{sB}")
    for sh in (1, 2, 4, 8):
        R(f"v_add_f32_dpp v{sA}, v{sA}, v{sA} row_shr:{sh} row_mask:0xf bank_mask:0xf bound_ctrl:1")
    R(f"v_add_f32_dpp v{sA}, v{sA}, v{sA} row_bcast:15 row_mask:0xa bank_mask:0xf")
    R(f"v_mul_f32 v{sA}, {hex(f2u(-LOG2E))}, v{sA}"); R(f"v_exp_f32 v{sA}, v{sA}"); R(f"v_add_f32 v{sA}, 1.0, v{sA}"); R(f"v_rcp_f32 v{vGO+2}, v{sA}")
    R(f"v_and_b32 v{t}, 31, v{vLANE}"); R(f"v_lshrrev_b32 v{t+1}, 5, v{vLANE}"); R(f"v_lshlrev_b32 v{t+1}, 2, v{t+1}"); R(f"v_mov_b32 v{t+2}, 0x7ffffff0")
    R([f"v_cmp_eq_u32 vcc, 31, v{t}", "s_nop 1", f"v_cndmask_b32 v{vGO}, v{t+2}, v{t+1}, vcc"])
    R(f"s_lshl_b32 s100, {sRB}, 4"); R(f"s_add_u32 s100, s100, {sCG}"); R(f"s_lshl_b32 s100, s100, 2"); R(f"s_add_u32 s100, s100, {sWAVE}")
    R(f"s_lshl_b32 s100, s100, 3"); R(f"s_add_u32 {sOG}, s100, {GOFF}")
    R(f"buffer_store_dword v{vGO+2}, v{vGO}, {srd(SWS)}, {sOG} offen {fl}", W=["@stG"])
    return ["@stG"]

def epi_qk(R, fl, prio):
    st = []
    for r in range(2):
        a = accA(0, r)
        for e in range(16): R(f"v_mul_f32 v{a+e}, {sQS}, v{a+e}", prio=prio)
        for k in range(8): R(f"v_cvt_pk_bf16_f32 v{a+k}, v{a+2*k}, v{a+2*k+1}", prio=prio)
        for hd in range(2):
            sr = f"s{4+r*2+hd}"
            R(f"s_add_u32 {sr}, {sOQ}, {hd*65536 + r*1024}")
            p = f"@stQ{r}{hd}"; st.append(p)
            R(f"buffer_store_dwordx4 {vr(a+4*hd,4)}, v{vL16}, {srd(SWS)}, {sr} offen {fl}", W=[p], prio=prio)
    return st

def epi_v(R, fl, prio):
    st = []
    for p in (1, 2):
        for r in range(2):
            a = accA(p, r)
            for k in range(8): R(f"v_cvt_pk_bf16_f32 v{a+k}, v{a+2*k}, v{a+2*k+1}", prio=prio)
            sr = f"s{8+(p-1)*2+r}"
            R(f"s_add_u32 {sr}, {sOV}, {(p-1)*2*131072 + r*2048}")
            for f in range(2):
                q = f"@stV{p}{r}{f}"; st.append(q)
                R(f"buffer_store_dwordx4 {vr(a+4*f,4)}, v{vL16}, {srd(SWS)}, {sr} offen offset:{f*1024} {fl}", W=[q], prio=prio)
    return st

def epi_swiglu(R, G, U, so, tmp, fl, nm):
    st = []
    for r in range(2):
        g, u = G(r), U(r)
        for e in range(16):
            R(f"v_mul_f32 v{u+e}, v{g+e}, v{u+e}")
            R(f"v_mul_f32 v{g+e}, {hex(f2u(-LOG2E))}, v{g+e}")
            R(f"v_exp_f32 v{g+e}, v{g+e}")
            R(f"v_add_f32 v{g+e}, 1.0, v{g+e}")
            R(f"v_rcp_f32 v{g+e}, v{g+e}")
            R(f"v_mul_f32 v{u+e}, v{u+e}, v{g+e}")
            if e & 1: R(f"v_cvt_pk_bf16_f32 v{g+e//2}, v{u+e-1}, v{u+e}")
        sr = f"s{tmp+r}"
        R(f"s_add_u32 {sr}, {so}, {r*144*1024}")
        for f in range(2):
            q = f"@stH{nm}{r}{f}"; st.append(q)
            R(f"buffer_store_dwordx4 {vr(g+4*f,4)}, v{vL16}, {srd(SWS)}, {sr} offen offset:{f*1024} {fl}", W=[q])
    return st

def phase1(R, typ, fl):
    M = "v_mfma_f32_32x32x16_bf16"
    p1_setup_type(R, typ)
    pend = {}
    pend[0] = dmaA(R, typ, 0, prio=4000)
    gate_loads(R)
    for c in range(1, 4): pend[c] = dmaA(R, typ, c, prio=3000)
    p1_setup_late(R, typ)
    stG = gate_compute(R, fl)
    stamp(R, ["@bar"] , ["@bar"])
    R("s_barrier", R=pend[0] + ["@bar"], W=["@rA0", "@bar"])
    stamp(R, ["@bar"] , ["@bar"])
    pendB = {}
    step = 0
    for c in range(8):
        reg = (c % 4) * 40960
        if c in (2, 6):
            for s in range(4): R(f"v_add_u32 v{vXA[s]}, 81920, v{vXA[s]}")
        if c == 4:
            for s in range(4): R(f"v_subrev_u32 v{vXA[s]}, 81920, v{vXA[s]}")
        for s in range(4):
            buf = step % 3; step += 1
            for r in range(2):
                R(f"ds_read_b128 {ar(xfrag(c,s,r),4)}, v{vXA[s]} offset:{(reg % 81920) + r*4096}", R=[f"@rA{c}"])
            for p in range(3): trread(R, wfrag(buf, p), reg + 16384 + s * 6144 + p * 2048, [f"@rA{c}"])
            if s == 3:
                if c < 7: R("s_barrier", R=pend[c+1] + ["@bar"], W=[f"@rA{c}", f"@rA{c+1}", f"@f{c}", "@bar"])
                else: R("s_barrier", R=pendB[0] + pendB[1] + ["@bar"], W=[f"@rA{c}", "@rB0", "@rB1", f"@f{c}", "@bar"])
                stamp(R, ["@bar"] , ["@bar"])
                if c < 4: pend[c+4] = dmaA(R, typ, c + 4, dep=[f"@f{c}"], prio=1000)
                else:
                    for cb in (2*(c-4), 2*(c-4)+1): pendB[cb] = dmaB(R, cb, dep=[f"@f{c}"], prio=1000)
            for p in range(3):
                for r in range(2):
                    a = vr(accA(p, r), 16); w = vr(wfrag(buf, p), 4); x = ar(xfrag(c, s, r), 4)
                    cin = "0" if (c == 0 and s == 0) else a
                    if typ == "B" and p > 0: R(f"{M} {a}, {x}, {w}, {cin}")
                    else: R(f"{M} {a}, {w}, {x}, {cin}")
    stQ = epi_qk(R, fl, 2000) + stG
    stH = []
    if typ == "B": stQ += epi_v(R, fl, 2000)
    else: stH += epi_swiglu(R, lambda r: accA(1, r), lambda r: accA(2, r), sOHA, 8, fl, "A")
    for c in range(8):
        if c in (2, 4, 6):
            R("s_barrier", R=pendB[c] + pendB[c+1] + ["@bar"], W=[f"@rB{c}", f"@rB{c+1}", "@bar"])
            stamp(R, ["@bar"] , ["@bar"])
        for s in range(4):
            buf = step % 3; step += 1
            for p in range(2): trread(R, wfrag(buf, p), regB(c) + s * 4096 + p * 2048, [f"@rB{c}"])
            for p in range(2):
                for r in range(2):
                    a = vr(accB(p, r), 16); w = vr(wfrag(buf, p), 4); x = ar(xfrag(c, s, r), 4)
                    cin = "0" if (c == 0 and s == 0) else a
                    R(f"{M} {a}, {w}, {x}, {cin}")
    stamp(R, [f"v{accB(1,1)}"], [f"v{accB(p,r)+e}" for p in range(2) for r in range(2) for e in range(16)])
    stH += epi_swiglu(R, lambda r: accB(0, r), lambda r: accB(1, r), sOHB, 12, fl, "B")
    return stQ, stH

aK = lambda kb: kb * 4
aV = lambda kb, f: 40 + kb * 8 + f * 4
aQ = lambda j: 120 + j * 4
vS = [0, 16, 32]; vM = 48; vN = 64; vO = [80, 160]; vD = 176; vPM = 184; vMX = 192; vTM = 193; vGq = [194, 195]
vVA = 216; vKB = 217; vT = 218
sBLK = "s62"

def att_setup(R):
    L = f"v{vLANE}"; T, T2 = "s100", "s101"
    R(f"s_lshl_b32 {T}, {sXCD}, 2"); R(f"s_and_b32 {T2}, {sIDX}, 3"); R(f"s_add_u32 s63, {T}, {T2}")
    R(f"s_lshr_b32 {T}, {sIDX}, 2"); R(f"s_lshl_b32 {T}, {T}, 2"); R(f"s_add_u32 {T}, {T}, {sWAVE}"); R(f"s_lshl_b32 s64, {T}, 1")
    R(f"s_sub_u32 {sBLK}, s64, 8")
    R(f"s_lshl_b32 {T}, s63, 16"); R(f"s_add_u32 s65, {T}, {KF}"); build_srd(R, SK, 24, 25, "s65", 65536)
    R(f"s_lshl_b32 {T2}, s64, 10"); R(f"s_add_u32 s66, {T}, {T2}")
    R(f"s_lshr_b32 {T}, s63, 1"); R(f"s_lshl_b32 {T}, {T}, 17"); R(f"s_add_u32 s67, {T}, {VF}"); build_srd(R, SV, 24, 25, "s67", 131072)
    R(f"s_and_b32 {T}, s63, 1"); R(f"s_lshl_b32 {T}, {T}, 8")
    R(f"v_and_b32 v{vT}, 15, {L}"); R(f"v_lshrrev_b32 v{vT+1}, 5, {L}"); R(f"v_lshlrev_b32 v{vKB}, 9, v{vT+1}")
    R(f"v_lshl_add_u32 v{vT}, v{vT}, 4, {T}"); R(f"v_add_u32 v{vVA}, v{vT}, v{vKB}")
    R(f"s_mul_i32 s68, s64, {144*1024}"); R(f"s_add_u32 {T}, s63, 112"); R(f"s_lshl_b32 {T}, {T}, 10"); R(f"s_add_u32 s68, s68, {T}"); R(f"s_add_u32 s68, s68, {A3}")
    R(f"s_lshl_b32 {T}, s64, 7"); R(f"s_add_u32 s69, {T}, {GOFF}")
    R(f"v_and_b32 v{vT+2}, 31, {L}"); R(f"v_lshlrev_b32 v{vT+3}, 2, v{vT+2}")
    for r in range(16):
        jj, i = r // 4, r % 4
        R(f"s_mov_b32 s{MASKS[r]}, {hex((0xffffffff << (8*jj+i)) & 0xffffffff)}")
        R(f"s_mov_b32 s{MASKS[r]+1}, {hex((0xffffffff << (8*jj+4+i)) & 0xffffffff)}")
    R(f"v_mov_b32 v{vT+8}, 0x7ffffff0")
    R(f"v_mov_b32 v{vT+4}, 0xffff"); R(f"v_mov_b32 v{vT+5}, 0xffff0000")
    for k in range(8):
        m0, m1 = MASKS[2*k], MASKS[2*k+1]
        R(f"v_cndmask_b32 v{vPM+k}, 0, v{vT+4}, s[{m0}:{m0+1}]"); R(f"v_cndmask_b32 v{vT+6}, 0, v{vT+5}, s[{m1}:{m1+1}]")
        R(f"v_or_b32 v{vPM+k}, v{vPM+k}, v{vT+6}")

def att_loads(R, fl, dep=()):
    dep = list(dep)
    for j in range(2):
        R(f"buffer_load_dwordx4 {ar(aQ(j),4)}, v{vL16}, {srd(SWS)}, s66 offen offset:{j*1024} {fl}", R=dep)
    for kb in (0, 8, 1, 2, 3, 4, 5, 6, 7, 9):
        if kb < 8:
            R([f"s_add_i32 s100, {sBLK}, {kb}", "s_cmp_lt_i32 s100, 0", "s_cselect_b64 vcc, -1, 0", "s_cselect_b32 s100, 0, s100", "s_lshl_b32 s100, s100, 10",
               f"v_cndmask_b32 v{vT+7}, v{vL16}, v{vKB}, vcc",
               f"buffer_load_dwordx4 {ar(aK(kb),4)}, v{vT+7}, {srd(SK)}, s100 offen {fl}"], R=dep)
        else:
            R([f"s_add_i32 s100, {sBLK}, {kb}", "s_lshl_b32 s100, s100, 10", f"buffer_load_dwordx4 {ar(aK(kb),4)}, v{vL16}, {srd(SK)}, s100 offen {fl}"], R=dep)
    for j in range(2):
        R(f"buffer_load_dword v{vGq[j]}, v{vT+3}, {srd(SWS)}, s69 offen offset:{j*128} {fl}", R=dep)
    for kb in range(10):
        R([f"s_add_i32 s100, {sBLK}, {kb}", "s_cmp_lt_i32 s100, 0", "s_cselect_b32 s101, 0, 0x3f803f80"] +
          [f"v_accvgpr_write_b32 a{aV(kb,0)+i}, s101" for i in range(8)])
    g = ["s_mov_b32 exec_lo, 0xffff", "s_mov_b32 exec_hi, 0xffff"]
    for kb in (0, 8, 1, 2, 3, 4, 5, 6, 7, 9):
        if kb < 8:
            g += [f"s_add_i32 s100, {sBLK}, {kb}", "s_cmp_lt_i32 s100, 0", "s_cselect_b64 vcc, -1, 0", "s_cselect_b32 s100, 0, s100", "s_lshl_b32 s100, s100, 11",
                  f"v_cndmask_b32 v{vT+7}, v{vVA}, v{vT+8}, vcc"]
            va = vT + 7
        else:
            g += [f"s_add_i32 s100, {sBLK}, {kb}", "s_lshl_b32 s100, s100, 11"]; va = vVA
        g += [f"buffer_load_dwordx4 {ar(aV(kb,f),4)}, v{va}, {srd(SV)}, s100 offen offset:{f*1024} {fl}" for f in range(2)]
    g += ["s_mov_b64 exec, -1"]
    R(g, R=dep)

def attention(R, fl):
    M = "v_mfma_f32_32x32x16_bf16"
    st = []; sb = 0
    def nxt():
        nonlocal sb
        b = vS[sb % 3]; sb += 1; return b
    mf = dict(crit=False)
    for j in range(2):
        Q = ar(aQ(j), 4)
        b0, b1 = nxt(), nxt()
        R(f"{M} {vr(b0,16)}, {ar(aK(j),4)}, {Q}, 0", **mf); R(f"{M} {vr(b1,16)}, {ar(aK(j+8),4)}, {Q}, 0", **mf)
        for r in range(16): R(f"v_cndmask_b32 v{vM+r}, v{b0+r}, v{b1+r}, s[{MASKS[r]}:{MASKS[r]+1}]")
        R(f"v_max3_f32 v{vMX}, v{vM}, v{vM+1}, v{vM+2}")
        for k in range(6): R(f"v_max3_f32 v{vMX}, v{vMX}, v{vM+3+2*k}, v{vM+4+2*k}")
        R(f"v_max_f32 v{vMX}, v{vMX}, v{vM+15}")
        for kb in range(j + 1, j + 8):
            b = nxt()
            R(f"{M} {vr(b,16)}, {ar(aK(kb),4)}, {Q}, 0", **mf)
            for k in range(8): R(f"v_max3_f32 v{vMX}, v{vMX}, v{b+2*k}, v{b+2*k+1}")
        R(f"v_mov_b32 v{vTM}, v{vMX}"); R(f"v_permlane32_swap_b32 v{vMX}, v{vTM}"); R(f"v_max_f32 v{vMX}, v{vMX}, v{vTM}")
        for r in range(16): R(f"v_sub_f32 v{vN+r}, 0, v{vMX}")
        O = vr(vO[j], 16)
        for r in range(16):
            R(f"v_sub_f32 v{vM+r}, v{vM+r}, v{vMX}"); R(f"v_exp_f32 v{vM+r}, v{vM+r}")
            if r & 1:
                k = r // 2
                R(f"v_cvt_pk_bf16_f32 v{vM+k}, v{vM+r-1}, v{vM+r}")
                R(f"v_and_b32 v{vD+k}, v{vPM+k}, v{vM+k}"); R(f"v_bfi_b32 v{vM+k}, v{vPM+k}, 0, v{vM+k}")
        R(f"{M} {O}, {ar(aV(j,0),4)}, {vr(vM,4)}, 0", **mf); R(f"{M} {O}, {ar(aV(j,1),4)}, {vr(vM+4,4)}, {O}", **mf)
        R(f"{M} {O}, {ar(aV(j+8,0),4)}, {vr(vD,4)}, {O}", **mf); R(f"{M} {O}, {ar(aV(j+8,1),4)}, {vr(vD+4,4)}, {O}", **mf)
        for kb in range(j + 1, j + 8):
            b = nxt()
            R(f"{M} {vr(b,16)}, {ar(aK(kb),4)}, {Q}, {vr(vN,16)}", **mf)
            for r in range(16):
                R(f"v_exp_f32 v{b+r}, v{b+r}")
                if r & 1: R(f"v_cvt_pk_bf16_f32 v{b+r//2}, v{b+r-1}, v{b+r}")
            R(f"{M} {O}, {ar(aV(kb,0),4)}, {vr(b,4)}, {O}", **mf); R(f"{M} {O}, {ar(aV(kb,1),4)}, {vr(b+4,4)}, {O}", **mf)
        o = vO[j]
        R(f"v_rcp_f32 v{o+8}, v{o+8}"); R(f"v_mul_f32 v{o+8}, v{o+8}, v{vGq[j]}")
        for e in range(8): R(f"v_mul_f32 v{o+e}, v{o+e}, v{o+8}")
        for k in range(4): R(f"v_cvt_pk_bf16_f32 v{o+k}, v{o+2*k}, v{o+2*k+1}")
        R(f"s_add_u32 s{4+j}, s68, {j*144*1024}")
        p = f"@stO{j}"; st.append(p)
        R(f"buffer_store_dwordx4 {vr(o,4)}, v{vL16}, {srd(SWS)}, s{4+j} offen {fl}", W=[p])
    return st

def acc3(cb, r): return 96 + (cb * 2 + r) * 16
v3D = [227, 228]; v3A = [229, 230]; v3G = [231, 232]; v3O = 233; v3X = 234; v3T = 235; v3R = [196, 197, 198]
def w3frag(buf, cb): return 240 + buf * 8 + cb * 4
NSLOT = 20
def p3_setup(R):
    L = f"v{vLANE}"; T, T2 = "s100", "s101"; t = v3T
    R(f"s_lshl_b32 {T}, {sXCD}, 2"); R(f"s_and_b32 {T2}, {sIDX}, 3"); R(f"s_add_u32 s12, {T}, {T2}")
    R(f"s_lshr_b32 s13, {sIDX}, 2"); R(f"s_lshl_b32 s14, s13, 7")
    build_srd(R, SWD, 16, 17, "s14", (1792 * 1024, "s14")); build_srd(R, SWO, 8, 9, "s14", (512 * 1024, "s14"))
    R(f"s_lshl_b32 {T}, s12, 16"); R(f"s_add_u32 s15, {T}, s14"); build_srd(R, SOUT, 20, 21, "s15", (2048 * 1024, "s15"))
    R(f"s_lshr_b32 s20, {sWAVE}, 1"); R(f"s_and_b32 s21, {sWAVE}, 1")
    R(f"s_lshl_b32 {T}, s12, 1"); R(f"s_add_u32 {T}, {T}, s20"); R(f"s_mul_i32 s16, {T}, {144*1024}"); R(f"s_add_u32 s16, s16, {A3}")
    R([f"s_mov_b32 s15, {144*1024}", f"s_cmp_eq_u32 s20, 0", f"s_cselect_b32 s15, s15, {hex((-144*1024) & 0xffffffff)}"])
    R(f"s_mul_i32 s17, {sWAVE}, 40960")
    R(f"s_mul_i32 s18, {sWAVE}, 28")
    R(f"s_add_u32 s19, s18, 28")
    R(f"s_and_b32 {T}, {sIDX}, 3"); R(f"s_mul_i32 {T}, {T}, 7"); R(f"s_mul_i32 {T2}, s13, 3"); R(f"s_add_u32 {T}, {T}, {T2}")
    R([f"s_cmp_ge_u32 {T}, 28", f"s_cselect_b32 {T2}, 28, 0", f"s_sub_u32 {T}, {T}, {T2}"])
    R(f"s_add_u32 s10, s18, {T}"); R(f"s_add_u32 s8, s18, {T}")
    R(f"v_lshrrev_b32 v{t}, 3, {L}"); R(f"v_and_b32 v{t+1}, 7, {L}"); R(f"v_bfe_u32 v{t+2}, {L}, 4, 1"); R(f"v_lshlrev_b32 v{t+2}, 2, v{t+2}")
    R(f"v_xor_b32 v{t+1}, v{t+1}, v{t+2}"); R(f"v_lshlrev_b32 v{t+1}, 4, v{t+1}"); R(f"v_lshl_add_u32 v{v3D[0]}, v{t}, 10, v{t+1}")
    R(f"v_add_u32 v{v3D[1]}, 7168, v{v3D[0]}")
    R(f"v_lshrrev_b32 v{t}, 5, {L}"); R(f"v_bfe_u32 v{t+1}, {L}, 2, 2"); R(f"v_lshl_add_u32 v{t}, v{t}, 2, v{t+1}"); R(f"v_lshl_add_u32 v{t}, v{t}, 7, s17")
    R(f"v_lshrrev_b32 v{t+1}, 1, v{t+1}"); R(f"v_xor_b32 v{t+1}, s21, v{t+1}"); R(f"v_lshl_add_u32 v{t}, v{t+1}, 6, v{t}")
    R(f"v_bfe_u32 v{t+2}, {L}, 4, 1"); R(f"v_lshl_add_u32 v{t}, v{t+2}, 5, v{t}"); R(f"v_and_b32 v{t+2}, 3, {L}")
    R(f"v_lshl_add_u32 v{v3A[0]}, v{t+2}, 3, v{t}"); R(f"v_xor_b32 v{v3A[1]}, 64, v{v3A[0]}")
    R(f"v_and_b32 v{t}, 31, {L}"); R(f"v_lshrrev_b32 v{t+1}, 5, {L}"); R(f"v_lshlrev_b32 v{t+1}, 4, v{t+1}"); R(f"v_lshl_add_u32 v{v3O}, v{t}, 10, v{t+1}")
    R(f"v_lshlrev_b32 v{t+3}, 2, v{t}")
    R(f"s_lshl_b32 {T}, s12, 8"); R(f"s_lshl_b32 {T2}, s20, 7"); R(f"s_add_u32 {T}, {T}, {T2}"); R(f"s_add_u32 s11, {T}, {GOFF}"); R(f"s_xor_b32 s14, s11, 128")
    R(f"v_add_u32 v{v3X}, s17, v{vL16}")
    for j in (1, 2, 3):
        R(f"s_xor_b32 {T}, {sWAVE}, {j}"); R(f"s_mul_i32 {T}, {T}, 40960"); R(f"v_add_u32 v{v3R[j-1]}, {T}, v{vL16}")
    R(f"s_lshl_b32 {T}, s20, 15"); R(f"s_lshl_b32 {T2}, s21, 6"); R(f"s_add_u32 s9, {T}, {T2}")

def phase3(R, fl, areg, depW=(), depH=(), depO=(), depG=()):
    M = "v_mfma_f32_32x32x16_bf16"
    for r in range(2):
        R(f"buffer_load_dword v{v3G[r]}, v{v3T+3}, {srd(SWS)}, {'s11' if r == 0 else 's14'} offen {fl}", R=list(depG), lat=2000)
        R(f"v_sub_f32 v{v3G[r]}, 1.0, v{v3G[r]}")
    nA = len(areg)
    for i in range(36):
        slot = i % NSLOT
        sw, sa = "s6", "s7"
        if i < 28:
            R([f"s_add_u32 m0, s17, {slot*2048}", f"s_lshl_b32 {sw}, s10, 14",
               f"buffer_load_dwordx4 v{v3D[0]}, {srd(SWD)}, {sw} offen lds", f"buffer_load_dwordx4 v{v3D[1]}, {srd(SWD)}, {sw} offen offset:1024 lds",
               "s_add_u32 s10, s10, 1", "s_cmp_ge_u32 s10, s19", "s_cselect_b32 s10, s18, s10"], R=list(depW), W=[f"@s{slot}"])
        else:
            R([f"s_lshl_b32 {sw}, {sWAVE}, 17", f"s_add_u32 m0, s17, {slot*2048}", f"s_add_u32 {sw}, {sw}, {(i-28)*16384}",
               f"buffer_load_dwordx4 v{v3D[0]}, {srd(SWO)}, {sw} offen lds", f"buffer_load_dwordx4 v{v3D[1]}, {srd(SWO)}, {sw} offen offset:1024 lds"], R=list(depW), W=[f"@s{slot}"])
        ab = areg[i % nA]
        if i < 28:
            R([f"s_lshl_b32 {sa}, s8, 10", f"s_add_u32 {sa}, {sa}, s16", f"buffer_load_dwordx4 {ar(ab,4)}, v{vL16}, {srd(SWS)}, {sa} offen {fl}",
               f"s_add_u32 {sa}, {sa}, s15", f"buffer_load_dwordx4 {ar(ab+4,4)}, v{vL16}, {srd(SWS)}, {sa} offen {fl}",
               "s_add_u32 s8, s8, 1", "s_cmp_ge_u32 s8, s19", "s_cselect_b32 s8, s18, s8"], R=list(depH))
        else:
            R([f"s_lshl_b32 {sa}, {sWAVE}, 13", f"s_add_u32 {sa}, {sa}, s16", f"s_add_u32 {sa}, {sa}, {(112+i-28)*1024}",
               f"buffer_load_dwordx4 {ar(ab,4)}, v{vL16}, {srd(SWS)}, {sa} offen {fl}",
               f"s_add_u32 {sa}, {sa}, s15", f"buffer_load_dwordx4 {ar(ab+4,4)}, v{vL16}, {srd(SWS)}, {sa} offen {fl}"], R=list(depO))
        buf = i % 2
        if i % 4 == 0: stamp(R, [f"@s{slot}", f"a{ab+4}"], [f"v{w3frag(buf,0)}"])
        for cb in range(2):
            for hf in range(2):
                R(f"ds_read_b64_tr_b16 {vr(w3frag(buf,cb)+2*hf,2)}, v{v3A[cb]} offset:{slot*2048 + hf*1024}", R=[f"@s{slot}"])
        if i == 28:
            for cb in range(2):
                for r in range(2):
                    for e in range(16): R(f"v_mul_f32 v{acc3(cb,r)+e}, v{acc3(cb,r)+e}, v{v3G[r]}")
        for cb in range(2):
            for r in range(2):
                a = vr(acc3(cb, r), 16)
                R(f"{M} {a}, {vr(w3frag(buf,cb),4)}, {ar(ab+4*r,4)}, {'0' if i == 0 else a}", crit=False)

def p3_final(R):
    blk = lambda j: acc3(j & 1, j >> 1)
    wr = []
    for j in (1, 2, 3):
        for q in range(4):
            p = f"@x{j}{q}"; wr.append(p)
            sl = (j * 4096 + q * 1024) // 2048
            R(f"ds_write_b128 v{v3X}, {vr(blk(j)+4*q,4)} offset:{j*4096+q*1024}", W=[p] + ([f"@s{sl}"] if q % 2 == 0 else []), R=[] if q % 2 == 0 else [f"@x{j}{q-1}o"])
            R.nodes[-1].W.add(p + "o")
    stamp(R, wr, ["@bar"])
    R("s_barrier", R=wr + ["@bar"], W=["@bar", "@xr"])
    stamp(R, ["@xr"], ["@xr"])
    me = blk(0)
    for j in (1, 2, 3):
        for q in range(4):
            R(f"ds_read_b128 {vr(16*(j-1)+4*q,4)}, v{v3R[j-1]} offset:{j*4096+q*1024}", R=["@xr"])
    for e in range(16):
        R(f"v_add_f32 v{me+e}, v{me+e}, v{e}"); R(f"v_add_f32 v{16+e}, v{16+e}, v{32+e}"); R(f"v_add_f32 v{me+e}, v{me+e}, v{16+e}")
    for k in range(8): R(f"v_cvt_pk_bf16_f32 v{me+k}, v{me+2*k}, v{me+2*k+1}")
    for pr in range(2):
        R(f"v_permlane32_swap_b32 v{me+4*pr}, v{me+4*pr+2}"); R(f"v_permlane32_swap_b32 v{me+4*pr+1}, v{me+4*pr+3}")
        R(f"buffer_store_dwordx4 {vr(me+4*pr,4)}, v{v3O}, {srd(SOUT)}, s9 offen offset:{pr*32}")

HEAD = open("gated_mix__sliding_block__swiglu_ffn__prompt.s.ref").read().split("; Override launch")[0]
def desc(name, vgpr=256, agpr=256):
    return f""".section .rodata,"a"
.p2align 6
.amdhsa_kernel {name}
  .amdhsa_next_free_vgpr {vgpr+agpr}
  .amdhsa_next_free_sgpr 102
  .amdhsa_accum_offset {vgpr}
  .amdhsa_group_segment_fixed_size 0
  .amdhsa_kernarg_size 88
  .amdhsa_user_sgpr_count 2
  .amdhsa_user_sgpr_kernarg_segment_ptr 1
  .amdhsa_system_sgpr_workgroup_id_x 1
.end_amdhsa_kernel
.text
"""
def kernel(name, ins):
    ins = pad_hazards(ins, True)
    print(name, "bytes", sum(sizes(ins)))
    return f".text\n.globl {name}\n.p2align 8\n.type {name},@function\n{name}:\n" + "\n".join(("" if i.kind == "label" else "  ") + i.text for i in ins) + "\n" + desc(name)

def split_version(rot=2, fl=""):
    LDS = 163840
    out = HEAD + "".join(f"; @launch kernel={k}_kernel grid=(256,1,1) block=(256,1,1) lds={LDS}\n" for k in ("p1", "p2", "p3"))
    out += '.amdgcn_target "amdgcn-amd-amdhsa--gfx950"\n'
    I = lambda *t: [Ins(x) for x in t]
    def start(n):
        _stn[0] = 0
        return I("s_cmp_ge_u32 s2, 256", f"s_cbranch_scc1 L_end{n}") + stamp_raw(True) + stamp_raw()
    ins = start(1)
    R = Region("p1pro"); prologue_common(R); p1_setup(R, rot)
    ins += R.schedule(verbose=True)
    ins += I(f"s_and_b32 s100, {sCG}, 3", "s_cmp_eq_u32 s100, 3", "s_cbranch_scc1 L_typeB")
    for typ in "AB":
        _stn[0] = 2
        R = Region("p1" + typ); phase1(R, typ, fl)
        if typ == "B": ins += I("L_typeB:")
        ins += R.schedule(verbose=True) + stamp_raw() + stamp_store(0) + I("s_endpgm")
    ins += I("L_end1:", "s_endpgm")
    out += kernel("p1_kernel", ins)
    ins = start(2)
    R = Region("p2"); prologue_common(R); build_srd(R, SWS, 24, 25, None, WS_SIZE); att_setup(R); att_loads(R, fl)
    stamp(R, ["a0", "a120"], ["a0"]); stamp(R, [f"a{aV(9,1)}"], [f"a{aV(0,0)}"])
    attention(R, fl)
    out += kernel("p2_kernel", ins + R.schedule(verbose=True) + stamp_raw() + stamp_store(1) + I("L_end2:", "s_endpgm"))
    ins = start(3)
    R = Region("p3"); prologue_common(R); build_srd(R, SWS, 24, 25, None, WS_SIZE); p3_setup(R); phase3(R, fl, list(range(0, 160, 8))); p3_final(R)
    out += kernel("p3_kernel", ins + R.schedule(verbose=True) + stamp_raw() + stamp_store(2) + I("L_end3:", "s_endpgm"))
    return out

if __name__ == "__main__":
    import argparse
    ap = argparse.ArgumentParser(); ap.add_argument("out"); ap.add_argument("--stamp", action="store_true"); ap.add_argument("--rot", type=int, default=2); ap.add_argument("--fl", default=""); ap.add_argument("--dbg", type=int, default=None)
    a = ap.parse_args()
    STAMP = a.stamp; DBGWG = a.dbg
    open(a.out, "w").write(split_version(a.rot, a.fl))
```
